```python
import torch

def _softmax(x, axis=-1):
    return torch.softmax(x, dim=axis)
def _gelu(x):
    return torch.nn.functional.gelu(x, approximate="tanh")
def _silu(x):
    return torch.nn.functional.silu(x)
def _sigmoid(x):
    return torch.sigmoid(x)
def _layernorm(x, axis=-1, eps=1e-5):
    m = x.mean(dim=axis, keepdim=True)
    v = x.var(dim=axis, keepdim=True, unbiased=False)
    return (x - m) / torch.sqrt(v + eps)
def _scatter_add(tgt, idx, src, axis=0):
    return tgt.clone().index_add_(axis, idx, src)
def _segment_sum(src, seg, n):
    out = torch.zeros((n,) + src.shape[1:], dtype=src.dtype)
    return out.index_add_(0, seg, src)
def _pad(x, pw):
    flat = tuple(v for pair in reversed(pw) for v in pair)
    return torch.nn.functional.pad(x, flat)

kernel_name = 'interleave_layers__linear_kernel_hedgehog__mixer_token_mlp__prompt'

def setup_inputs():

    _w = (lambda a: (lambda t: t.to(torch.bfloat16) if t.is_floating_point() else t)(torch.as_tensor(a)))
    def _A_setup():
        B, S, D, H = 1, 2048, 640, 32
        Dh = D // H
        return {
            "x": _w((lambda *s: torch.randn(*s, dtype=torch.bfloat16) * 0.05)(B, S, D)),
            "wqkv": _w((lambda *s: torch.randn(*s, dtype=torch.bfloat16) * 0.4)(D, 3 * D)),
            "w_phi": _w((lambda *s: torch.randn(*s, dtype=torch.bfloat16) * 0.4)(H, Dh, Dh) * (Dh ** -0.5)),
            "wo": _w((lambda *s: torch.randn(*s, dtype=torch.bfloat16) * 0.05)(D, D)),
        }
    _A_in = _A_setup()

    def _B_setup():
        B, S, D, F = 1, 2048, 640, 1536
        return {
            "x": _w((lambda *s: torch.randn(*s, dtype=torch.bfloat16) * 0.05)(B, S, D)),
            "w1": _w((lambda *s: torch.randn(*s, dtype=torch.bfloat16) * 0.8)(S, F) * (S ** -0.5)),
            "b1": _w((lambda *s: torch.randn(*s, dtype=torch.bfloat16) * 0.8)(F) * 0.02),
            "w2": _w((lambda *s: torch.randn(*s, dtype=torch.bfloat16) * 0.8)(F, S) * (F ** -0.5)),
            "b2": _w((lambda *s: torch.randn(*s, dtype=torch.bfloat16) * 0.8)(S) * 0.02),
        }
    _B_in = _B_setup()

    return {
        "A_x": _A_in["x"],
        "A_wqkv": _A_in["wqkv"],
        "A_w_phi": _A_in["w_phi"],
        "A_wo": _A_in["wo"],
        "B_x": _B_in["x"],
        "B_w1": _B_in["w1"],
        "B_b1": _B_in["b1"],
        "B_w2": _B_in["w2"],
        "B_b2": _B_in["b2"],
    }

def reference(A_x, A_wqkv, A_w_phi, A_wo, B_x, B_w1, B_b1, B_w2, B_b2):
    def _A_ref(x, wqkv, w_phi, wo):
        B, S, D = x.shape
        H = 32; Dh = D // H
        qkv = (lambda x, *d: x.permute(*d))((x @ wqkv).reshape(B, S, 3, H, Dh), 2, 0, 3, 1, 4)
        q, k, v = qkv[0], qkv[1], qkv[2]
        pq = torch.einsum("bhsd,hdf->bhsf", q, w_phi)
        pk = torch.einsum("bhsd,hdf->bhsf", k, w_phi)
        phi_q = torch.concatenate([_softmax(pq, axis=-1), _softmax(-pq, axis=-1)], axis=-1)
        phi_k = torch.concatenate([_softmax(pk, axis=-1), _softmax(-pk, axis=-1)], axis=-1)
        kv = torch.einsum("bhsf,bhsd->bhfd", phi_k, v)
        z  = torch.einsum("bhsf->bhf", phi_k)
        num = torch.einsum("bhqf,bhfd->bhqd", phi_q, kv)
        den = torch.einsum("bhqf,bhf->bhq", phi_q, z)[..., None] + 1e-6
        o = num / den
        return (lambda x, *d: x.permute(*d))(o, 0, 2, 1, 3).reshape(B, S, D) @ wo

    def _B_ref(x, w1, b1, w2, b2):
        B, S, D = x.shape
        h = _layernorm(x, axis=-1)
        u = torch.einsum("bsd,sf->bdf", h, w1) + b1
        u = _gelu(u)
        y = torch.einsum("bdf,fs->bds", u, w2) + b2
        return (lambda x, *d: x.permute(*d))(y, 0, 2, 1)

    x = A_x
    x = x + _A_ref(_layernorm(x, axis=-1), A_wqkv, A_w_phi, A_wo)
    x = x + _B_ref(_layernorm(x, axis=-1), B_w1, B_b1, B_w2, B_b2)
    x = x + _A_ref(_layernorm(x, axis=-1), A_wqkv, A_w_phi, A_wo)
    x = x + _B_ref(_layernorm(x, axis=-1), B_w1, B_b1, B_w2, B_b2)
    return x
```

```python
from asmlib import *
from layout import *
from k0 import prologue

LOG2E = 1.4426950408889634
def fhex(x):
    import struct
    return hex(struct.unpack('<I', struct.pack('<f', x))[0])

def softmax2(k, P, T, E, OUT, tmp):
    mx, mn = tmp, tmp + 1
    k(f'v_max3_f32 v{mx}, v{P}, v{P+1}, v{P+2}\nv_min3_f32 v{mn}, v{P}, v{P+1}, v{P+2}')
    for j in range(3, 19, 2):
        k(f'v_max3_f32 v{mx}, v{mx}, v{P+j}, v{P+j+1}\nv_min3_f32 v{mn}, v{mn}, v{P+j}, v{P+j+1}')
    k(f'v_max_f32 v{mx}, v{mx}, v{P+19}\nv_min_f32 v{mn}, v{mn}, v{P+19}')
    c1, c2 = tmp + 2, tmp + 4
    k(f'v_mul_f32 v{c1}, v{mx}, -v{T}\nv_mul_f32 v{c2}, v{mn}, v{T}'.replace('v_mul_f32 v%d, v%d, -v' % (c1, mx), 'v_mul_f32_e64 v%d, v%d, -v' % (c1, mx)))
    for j in range(0, 20, 2):
        k(f'v_pk_fma_f32 {V(E+j,2)}, {V(P+j,2)}, {V(T,2)}, {V(c1,2)} op_sel_hi:[1,0,0]')
        k(f'v_pk_fma_f32 {V(E+20+j,2)}, {V(P+j,2)}, {V(T,2)}, {V(c2,2)} op_sel_hi:[1,0,0] neg_lo:[1,0,0] neg_hi:[1,0,0]')
    for j in range(40):
        k(f'v_exp_f32 v{E+j}, v{E+j}')
    s1, s2 = tmp, tmp + 2
    k(f'v_pk_add_f32 {V(s1,2)}, {V(E,2)}, {V(E+2,2)}\nv_pk_add_f32 {V(s2,2)}, {V(E+20,2)}, {V(E+22,2)}')
    for j in range(4, 20, 2):
        k(f'v_pk_add_f32 {V(s1,2)}, {V(s1,2)}, {V(E+j,2)}\nv_pk_add_f32 {V(s2,2)}, {V(s2,2)}, {V(E+20+j,2)}')
    r1, r2 = tmp + 4, tmp + 6
    k(f'v_add_f32 v{r1}, v{s1}, v{s1+1}\nv_add_f32 v{r2}, v{s2}, v{s2+1}')
    k(f'v_rcp_f32 v{r1}, v{r1}\nv_rcp_f32 v{r2}, v{r2}')
    for j in range(0, 20, 2):
        k(f'v_pk_mul_f32 {V(E+j,2)}, {V(E+j,2)}, {V(r1,2)} op_sel_hi:[1,0]')
        k(f'v_pk_mul_f32 {V(E+20+j,2)}, {V(E+20+j,2)}, {V(r2,2)} op_sel_hi:[1,0]')
    for j in range(20):
        k(f'v_cvt_pk_bf16_f32 v{OUT+j}, v{E+2*j}, v{E+2*j+1}')

def a1_stub(k, layer):
    k(f's_mov_b32 s60, {XN[layer]}\ns_mov_b32 s61, {STA[layer]}\ns_mov_b32 s62, {KV[layer]}\ns_mov_b32 s63, {FLG + 2048*layer}\ns_mov_b32 s64, {OB[layer]}')

def gen_a1():
    k = K('a1')
    prologue(k, 256, [(8, 88, WS_BYTES)])
    WS = 's[8:11]'
    k('s_and_b32 s3, s2, 1\ns_lshl_b32 s3, s3, 3\ns_bfe_u32 s4, s2, 0x30003\ns_add_u32 s21, s3, s4')
    k('s_bfe_u32 s3, s2, 0x20001\ns_lshl_b32 s3, s3, 2\ns_lshr_b32 s4, s2, 6\ns_add_u32 s22, s3, s4')
    k('s_lshl_b32 s23, s21, 2\ns_add_u32 s23, s23, s20')
    k(f's_mul_i32 s29, s22, {WP_STRIDE}\ns_mul_i32 s31, s20, 3072\ns_add_u32 s30, s29, s31')
    k('s_mul_i32 s32, s23, 40960\ns_add_u32 s32, s32, s60')
    k('v_lshlrev_b32 v2, 4, v1\nv_and_b32 v6, 31, v1\nv_lshrrev_b32 v7, 5, v1')
    k('s_lshl_b32 s33, s23, 8\ns_add_u32 s33, s33, s61\nv_lshlrev_b32 v14, 3, v6')
    def chunk(c):
        k(f's_add_u32 m0, s31, {12288*c}\ns_add_u32 s34, s30, {12288*c}')
        for j in range(3):
            k(f'buffer_load_dwordx4 v2, {WS}, s34 offen offset:{1024*j} lds'); k.issue(('c', c))
        k(f's_add_u32 s35, s32, {4096*c}')
        for j in range(4):
            k(f'buffer_load_dwordx4 {A(16*c+4*j,4)}, v2, {WS}, s35 offen offset:{1024*j}'); k.issue(('c', c))
    def ph2dma(g):
        n = 4 if g < 2 else 2
        k(f's_add_u32 m0, s36, {122880+4096*g}\ns_add_u32 s34, s37, {122880+4096*g}')
        for j in range(n):
            k(f'buffer_load_dwordx4 v2, {WS}, s34 offen offset:{1024*j} lds'); k.issue('p2')
    chunk(0)
    k.mem('buffer_load_dwordx2', 'v[8:9]', 'v14', WS, 's33', 0, tag='st')
    for c in range(1, 8): chunk(c)
    k('s_mul_i32 s36, s20, 10240\ns_add_u32 s37, s29, s36')
    k('v_add_u32 v4, 61440, v2\nv_add_u32 v5, 122880, v2')
    ACC, BUF = 32, 96
    def reads(c):
        b = BUF + 48*(c & 1)
        for j in range(12):
            off = (12*c + j) * 1024
            if off < 61440: k(f'ds_read_b128 {V(b+4*j,4)}, v2 offset:{off}')
            else: k(f'ds_read_b128 {V(b+4*j,4)}, v4 offset:{off-61440}')
    def mf(c, st):
        b = BUF + 48*(c & 1)
        s = 4*c + st
        for T in range(3):
            cc = V(ACC+16*T, 16)
            k(f'v_mfma_f32_32x32x16_bf16 {cc}, {V(b+12*st+4*T,4)}, {A(4*s,4)}, {cc if s else 0}')
    k.vmwait(('c', 0)); k('s_barrier'); reads(0)
    for c in range(10):
        k('s_waitcnt lgkmcnt(9)'); mf(c, 0)
        k('s_waitcnt lgkmcnt(6)'); mf(c, 1)
        if c < 9:
            k.vmwait(('c', c+1)); k('s_barrier')
            if c == 0: chunk(8)
            if c == 1: chunk(9)
            if c == 2:
                for T in range(4): k.mem('buffer_load_dwordx4', V(16+4*T, 4), 'v2', WS, 's29', 163840 + 1024*T, tag='ex')
                ph2dma(0)
            if c == 3: ph2dma(1); ph2dma(2)
            k('s_waitcnt lgkmcnt(3)')
            reads(c+1)
            if c == 0:
                k(f'v_mul_f32 v8, {fhex(1/640)}, v8\nv_mul_f32 v9, {fhex(1/640)}, v9\nv_fma_f32 v9, -v8, v8, v9\nv_max_f32 v9, 0, v9\nv_add_f32 v9, {fhex(1e-5)}, v9\nv_rsq_f32 v10, v9')
                k('v_sub_f32 v192, 0, v8\nv_cvt_pk_bf16_f32 v193, v192, v192\nv_lshlrev_b32 v194, 16, v193\nv_sub_f32 v194, v192, v194\nv_cvt_pk_bf16_f32 v194, v194, v194')
                k('v_mov_b32 v195, 0xffff\nv_bfi_b32 v196, v195, v194, v193\nv_bfi_b32 v197, v195, v193, v194\nv_and_b32 v198, v195, v194')
                k('v_cmp_eq_u32 vcc, 1, v7')
                k('v_cndmask_b32 v12, v193, v196, vcc\nv_cndmask_b32 v13, v196, v197, vcc\nv_cndmask_b32 v14, v197, v193, vcc\nv_cndmask_b32 v15, v193, v198, vcc')
                k(f'v_mul_f32 v8, {fhex(LOG2E)}, v10')
            mf(c, 2)
            k('s_waitcnt lgkmcnt(12)'); mf(c, 3)
        else:
            k('s_waitcnt lgkmcnt(3)'); mf(c, 2)
            k('s_waitcnt lgkmcnt(0)'); mf(c, 3)
    k.vmwait('ex')
    for T in range(3):
        cc = V(ACC+16*T, 16)
        k(f'v_mfma_f32_32x32x16_bf16 {cc}, {V(16+4*T,4)}, v[12:15], {cc}')
    k('s_lshl_b32 s3, s20, 5\nv_lshl_add_u32 v200, v7, 7, v6\nv_add_u32 v200, s3, v200\nv_mul_u32_u24 v200, 160, v200')
    k('s_lshr_b32 s24, s20, 1\ns_and_b32 s25, s20, 1')
    k('v_lshrrev_b32 v201, 2, v1\nv_mul_u32_u24 v201, 160, v201\nv_and_b32 v202, 3, v1\nv_lshl_add_u32 v201, v202, 3, v201')
    k('s_mul_i32 s3, s24, 20480\ns_lshl_b32 s4, s25, 5\ns_add_u32 s4, s4, 64\nv_add_u32 v201, s3, v201\nv_add_u32 v202, s4, v201')
    P = 96; E = 128
    softmax2(k, ACC, 8, E, P, 192)
    for j in range(0, 20, 2):
        k(f'v_pk_mul_f32 {V(ACC+20+j,2)}, {V(ACC+20+j,2)}, v[10:11] op_sel_hi:[1,0]')
    for j in range(10):
        k(f'v_cvt_pk_bf16_f32 v{P+20+j}, v{ACC+20+2*j}, v{ACC+21+2*j}')
    k(f'v_mov_b32 v{P+30}, 0x3f80\nv_mov_b32 v{P+31}, 0')
    k('s_barrier')
    for j in range(8):
        k(f'ds_write_b128 v200, {V(P+4*j,4)} offset:{16*j}')
    k('v_and_b32 v203, 15, v1\ns_lshl_b32 s3, s25, 4\ns_sub_u32 s3, s3, 8\nv_add_u32 v203, s3, v203\nv_cmp_gt_u32 s[40:41], 21, v203')
    k('v_mul_u32_u24 v203, 80, v203\nv_lshrrev_b32 v204, 4, v1\nv_lshl_add_u32 v203, v204, 3, v203\ns_mul_i32 s3, s24, 1680\nv_add_u32 v203, s3, v203')
    k(f's_lshl_b32 s26, s22, 4\ns_add_u32 s27, s26, s21\ns_mul_i32 s27, s27, {KV_STRIDE}\ns_add_u32 s27, s27, s62')
    k(f's_mul_i32 s26, s26, {KV_STRIDE}\ns_add_u32 s26, s26, s62')
    k('s_waitcnt lgkmcnt(0)\ns_barrier')
    TR = 128; KA = 192 + 16
    for q in range(4):
        for t in range(4):
            for hf in range(2):
                r = TR + 16*q + 4*t + 2*hf
                if t < 3: k(f'ds_read_b64_tr_b16 {V(r,2)}, v201 offset:{q*5120+hf*2560+t*32}')
                else: k(f'ds_read_b64_tr_b16 {V(r,2)}, v202 offset:{q*5120+hf*2560}')
        if q >= 1:
            k('s_waitcnt lgkmcnt(8)')
            for t in range(3):
                cc = V(KA+4*t, 4); r = TR + 16*(q-1)
                k(f'v_mfma_f32_16x16x32_bf16 {cc}, {V(r+4*t,4)}, {V(r+12,4)}, {cc if q>1 else 0}')
    k('s_waitcnt lgkmcnt(0)')
    for t in range(3):
        cc = V(KA+4*t, 4); r = TR + 48
        k(f'v_mfma_f32_16x16x32_bf16 {cc}, {V(r+4*t,4)}, {V(r+12,4)}, {cc}')
    for t in range(3):
        k(f'v_cvt_pk_bf16_f32 v{220+2*t}, v{KA+4*t}, v{KA+4*t+1}\nv_cvt_pk_bf16_f32 v{221+2*t}, v{KA+4*t+2}, v{KA+4*t+3}')
    k('s_mov_b64 exec, s[40:41]')
    k(f'buffer_store_dwordx2 v[220:221], v203, {WS}, s27 offen sc1\nbuffer_store_dwordx2 v[222:223], v203, {WS}, s27 offen offset:32 sc1')
    k('s_mov_b32 exec_hi, 0')
    k(f'buffer_store_dwordx2 v[224:225], v203, {WS}, s27 offen offset:64 sc1')
    k('s_mov_b64 exec, -1')
    k('s_lshl_b32 s28, s22, 7\ns_add_u32 s28, s28, s63\ns_lshl_b32 s3, s21, 2\ns_add_u32 s38, s28, s3')
    k('v_mov_b32 v226, 1\nv_mov_b32 v227, 0')
    k('s_waitcnt vmcnt(0)\ns_barrier')
    k('s_cmp_lg_u32 s20, 0\ns_cbranch_scc1 a1_noflag\ns_mov_b64 exec, 1')
    k(f'buffer_store_dword v226, v227, {WS}, s38 offen sc1')
    k('s_mov_b64 exec, -1\na1_noflag:')
    NS = 14
    def rd2(s): k(f'ds_read_b128 {V(BUF+4*(s%NS),4)}, v5 offset:{1024*s}')
    for s in range(12): rd2(s)
    cc = V(ACC+48, 16)
    k(f'v_mfma_f32_32x32x16_bf16 {cc}, v[28:31], v[12:15], 0')
    for s in range(40):
        k(f's_waitcnt lgkmcnt({min(11, 39-s)})')
        k(f'v_mfma_f32_32x32x16_bf16 {cc}, {V(BUF+4*(s%NS),4)}, {A(4*s,4)}, {cc}')
        if s + 12 < 40: rd2(s+12)
    k('v_lshrrev_b32 v200, 3, v6\nv_and_b32 v201, 3, v6\nv_lshl_add_u32 v200, v200, 2, v201\nv_bfe_u32 v201, v6, 2, 1')
    k('v_cmp_eq_u32 vcc, v201, v7\nv_cmp_gt_u32 s[42:43], 5, v200')
    k('v_mul_u32_u24 v200, 80, v200\nv_mul_u32_u24 v201, 1680, v201\nv_add_u32 v200, v200, v201\nv_add_u32 v201, 1280, v200\nv_mov_b32 v202, 3360')
    k('s_and_b64 s[42:43], s[42:43], vcc\nv_cndmask_b32 v200, v202, v200, vcc\nv_cndmask_b32 v201, v202, v201, s[42:43]')
    k('v_lshlrev_b32 v203, 4, v0\nv_lshlrev_b32 v204, 2, v1')
    softmax2(k, ACC+40, 8, E, P, 192)
    k('s_cmp_lg_u32 s20, 0\ns_cbranch_scc1 a1_polled\ns_mov_b64 exec, 0xffff\ns_mov_b32 s5, 0x40000')
    k('a1_poll:')
    k(f'buffer_load_dword v205, v204, {WS}, s28 offen sc1\ns_sub_u32 s5, s5, 1\ns_cbranch_scc1 a1_pollout\ns_waitcnt vmcnt(0)\nv_cmp_ne_u32 vcc, 1, v205\ns_nop 1\ns_cmp_lg_u64 vcc, 0\ns_cbranch_scc1 a1_poll')
    k('a1_pollout:\ns_waitcnt vmcnt(0)\ns_mov_b64 exec, -1\na1_polled:\ns_barrier')
    k('v_cmp_gt_u32 vcc, 210, v0\ns_nop 1\ns_mov_b64 s[44:45], vcc\ns_mov_b64 exec, vcc')
    k.inval()
    for j in range(16):
        k.mem('buffer_load_dwordx4', V(128+4*j, 4), 'v203', WS, 's26', KV_STRIDE*j, 'sc1', tag=('kv', j))
    k('s_mov_b64 exec, -1')
    k('s_mov_b32 s3, 0x3f80\ns_mov_b32 s4, 0x3f800000')
    for r in range(8): k(f'v_mov_b32 v{208+r}, 0')
    for j in range(16):
        if j % 2 == 0: k.vmwait(('kv', j+1))
        for r in range(4):
            k(f'v_dot2c_f32_bf16 v{208+2*r}, s3, v{128+4*j+r}\nv_dot2c_f32_bf16 v{209+2*r}, s4, v{128+4*j+r}')
    for r in range(4):
        k(f'v_cvt_pk_bf16_f32 v{216+r}, v{208+2*r}, v{209+2*r}')
    for r in range(4):
        k(f'v_cndmask_b32 v{216+r}, 0, v{216+r}, s[44:45]')
    k('ds_write_b128 v203, v[216:219]')
    k('v_lshrrev_b32 v205, 4, v6\nv_mul_u32_u24 v205, 20480, v205\nv_and_b32 v206, 15, v6\nv_lshl_add_u32 v205, v206, 4, v205')
    k('v_lshl_add_u32 v206, v7, 3, v205\nv_lshl_add_u32 v205, v7, 9, v205')
    k('s_mul_i32 s3, s23, 40960\ns_mul_i32 s4, s22, 1280\ns_add_u32 s3, s3, s4\ns_add_u32 s39, s3, s64')
    k('s_waitcnt lgkmcnt(0)\ns_barrier')
    for s in range(5):
        k(f'ds_read_b128 {V(128+8*s,4)}, v200 offset:{16*s}\nds_read_b128 {V(132+8*s,4)}, v201 offset:{16*s}')
    for s in range(5):
        k(f's_waitcnt lgkmcnt({8-2*s})')
        for T in range(2):
            cc = V(ACC+16*T, 16)
            k(f'v_mfma_f32_32x32x16_bf16 {cc}, {V(128+8*s+4*T,4)}, {V(P+4*s,4)}, {cc if s else 0}')
    k(f'v_add_f32 v192, {fhex(1e-6)}, v{ACC+20}\nv_rcp_f32 v192, v192')
    for j in range(0, 20, 2):
        k(f'v_pk_mul_f32 {V(ACC+j,2)}, {V(ACC+j,2)}, v[192:193] op_sel_hi:[1,0]')
    for j in range(10):
        k(f'v_cvt_pk_bf16_f32 v{128+j}, v{ACC+2*j}, v{ACC+2*j+1}')
    k(f'buffer_store_dwordx4 v[128:131], v205, {WS}, s39 offen sc1\nbuffer_store_dwordx4 v[132:135], v205, {WS}, s39 offen offset:256 sc1')
    k(f'buffer_store_dwordx2 v[136:137], v206, {WS}, s39 offen offset:1024 sc1')
    k('a1_end:\ns_endpgm')
    return k
```

```python
from asmlib import *
from layout import *
from k0 import prologue
from a1 import fhex, LOG2E
WS = 's[8:11]'

def map_8x4(k):
    k('s_bfe_u32 s3, s2, 0x20001\ns_lshl_b32 s3, s3, 3\ns_bfe_u32 s4, s2, 0x30003\ns_add_u32 s21, s3, s4')
    k('s_and_b32 s3, s2, 1\ns_lshl_b32 s3, s3, 2\ns_lshr_b32 s4, s2, 6\ns_add_u32 s22, s3, s4')

def reduce4(k, accreg, nfr, lds0, T, addr_w, addr_r, OUT):
    blk = 3*nfr*1024
    for n in range(1, 4):
        k(f's_add_u32 s3, s20, {n}\ns_and_b32 s3, s3, 3\ns_mul_i32 s3, s3, {blk}\ns_add_u32 s3, s3, {lds0 + (n-1)*nfr*1024}\nv_add_u32 v{addr_w+n-1}, s3, v2')
    k(f's_mul_i32 s3, s20, {blk}\ns_add_u32 s3, s3, {lds0}\nv_add_u32 v{addr_r}, s3, v2')
    cnt = 0
    for n in range(1, 4):
        for c in range(nfr):
            k(f'ds_write_b128 v{addr_w+n-1}, {accreg(n,c)} offset:{1024*c}')
    own = accreg(0, 0)
    if own[0] == 'a':
        for c in range(nfr):
            b = int(accreg(0, c)[2:].split(':')[0])
            for r in range(4): k(f'v_accvgpr_read_b32 v{OUT+4*c+r}, a{b+r}')
    k('s_waitcnt lgkmcnt(0)\ns_barrier')
    for j in range(3*nfr):
        k(f'ds_read_b128 {V(T+4*j,4)}, v{addr_r} offset:{1024*j}')
    for n in range(3):
        k(f's_waitcnt lgkmcnt({(2-n)*nfr})')
        for c in range(nfr):
            for r in (0, 2):
                src = OUT + 4*c + r
                if own[0] == 'v' and n == 0:
                    src = int(accreg(0, c)[2:].split(':')[0]) + r
                k(f'v_pk_add_f32 {V(OUT+4*c+r,2)}, {V(src,2)}, {V(T+4*(n*nfr+c)+r,2)}')

def a2_stub(k, layer):
    k(f's_mov_b32 s60, {OB[layer]}\ns_mov_b32 s61, {XN[layer]}\ns_mov_b32 s62, {XT[layer]}\ns_mov_b32 s63, {STB[layer]}')

def gen_a2():
    k = K('a2')
    prologue(k, 256, [(8, 88, WS_BYTES)])
    map_8x4(k)
    k('v_lshlrev_b32 v2, 4, v1\nv_add_u32 v3, 4096, v2\nv_and_b32 v4, 15, v1\nv_lshrrev_b32 v5, 4, v1')
    k('s_mul_i32 s23, s20, 5120\ns_lshl_b32 s24, s21, 2')
    for n in range(4):
        k(f's_add_u32 s3, s20, {n}\ns_and_b32 s3, s3, 3\ns_add_u32 s3, s3, s24\ns_mul_i32 s3, s3, 20480\ns_add_u32 s3, s3, s23\ns_add_u32 s{30+n}, s3, s60')
    k(f's_mul_i32 s3, s22, 102400\ns_add_u32 s3, s3, s23\ns_add_u32 s34, s3, {WO}')
    for c in range(1, 5): k(f's_add_u32 s{34+c}, s34, {20480*c}')
    OF, WF = 0, 80
    for s in range(5):
        vo, imm = ('v2', 1024*s) if s < 4 else ('v3', 0)
        for n in range(4):
            k.mem('buffer_load_dwordx4', A(OF+16*s+4*n, 4), vo, WS, f's{30+n}', imm, tag=('s', s))
        for c in range(5):
            k.mem('buffer_load_dwordx4', A(WF+20*s+4*c, 4), vo, WS, f's{34+c}', imm, tag=('s', s))
    k('s_lshr_b32 s3, s20, 1\ns_lshl_b32 s25, s21, 1\ns_add_u32 s25, s25, s3\ns_and_b32 s26, s20, 1')
    k('s_mul_i32 s3, s25, 40960\ns_mul_i32 s4, s22, 5120\ns_add_u32 s3, s3, s4\ns_lshl_b32 s4, s26, 8\ns_add_u32 s3, s3, s4\ns_add_u32 s27, s3, s61')
    k('v_lshlrev_b32 v6, 4, v4\nv_and_b32 v7, 1, v5\nv_lshl_add_u32 v7, v7, 9, v6\nv_add_u32 v7, 4096, v7\nv_lshl_add_u32 v6, v5, 9, v6')
    RF = 8
    k.mem('buffer_load_dwordx4', V(RF, 4), 'v6', WS, 's27', 0, tag='r')
    k.mem('buffer_load_dwordx4', V(RF+4, 4), 'v6', WS, 's27', 2048, tag='r')
    k.mem('buffer_load_dwordx4', V(RF+8, 4), 'v7', WS, 's27', 0, tag='r')
    k('v_and_b32 v28, 1, v4\nv_cmp_eq_u32 vcc, 1, v28\nv_mov_b32 v28, 0x3f80\nv_mov_b32 v29, 0x3f800000\nv_cndmask_b32 v28, v28, v29, vcc')
    k('v_lshrrev_b32 v29, 1, v4\nv_lshlrev_b32 v30, 2, v5\nv_sub_u32 v29, v29, v30')
    for hi in range(2):
        for r in range(4):
            k(f'v_cmp_eq_u32 vcc, {r - 8*hi}, v29\nv_cndmask_b32 v{20+4*hi+r}, 0, v28, vcc')
    ACC = 32
    acc = lambda n, c: V(ACC + 20*n + 4*c, 4)
    for s in range(5):
        k.vmwait(('s', s))
        for n in range(4):
            for c in range(5):
                k(f'v_mfma_f32_16x16x32_bf16 {acc(n,c)}, {A(OF+16*s+4*n,4)}, {A(WF+20*s+4*c,4)}, {acc(n,c) if s else 0}')
        if s == 3:
            k.vmwait('r') if False else None
    k.vmwait('r')
    for c in range(5):
        k(f'v_mfma_f32_16x16x32_bf16 {acc(0,c)}, {V(RF+4*(c>>1),4)}, {V(20+4*(c&1),4)}, {acc(0,c)}')
    OUT = 112; T = 132
    reduce4(k, acc, 5, 0, T, 8, 11, OUT)
    k('s_mul_i32 s3, s22, 327680\ns_lshl_b32 s4, s25, 10\ns_add_u32 s3, s3, s4\ns_lshl_b32 s4, s26, 3\ns_add_u32 s3, s3, s4\ns_add_u32 s28, s3, s62')
    k.inval()
    for c in range(5):
        k(f'v_cvt_pk_bf16_f32 v{T+2*c}, v{OUT+4*c}, v{OUT+4*c+1}\nv_cvt_pk_bf16_f32 v{T+2*c+1}, v{OUT+4*c+2}, v{OUT+4*c+3}')
        k.mem('buffer_store_dwordx2', V(T+2*c, 2), 'v2', WS, 's28', 65536*c, 'sc1')
    for r in range(4):
        k(f'v_add_f32 v{32+2*r}, v{OUT+r}, v{OUT+4+r}\nv_mul_f32 v{33+2*r}, v{OUT+r}, v{OUT+r}')
    for c in range(1, 5):
        for r in range(4):
            if c >= 2: k(f'v_add_f32 v{32+2*r}, v{32+2*r}, v{OUT+4*c+r}')
            k(f'v_fmac_f32 v{33+2*r}, v{OUT+4*c+r}, v{OUT+4*c+r}')
    for rot in (8, 4, 2, 1):
        for j in range(8):
            k(f'v_add_f32_dpp v{32+j}, v{32+j}, v{32+j} row_ror:{rot} row_mask:0xf bank_mask:0xf')
    for j in range(1, 8):
        k(f'v_cmp_eq_u32 vcc, {j}, v4\nv_cndmask_b32 v32, v32, v{32+j}, vcc')
    k('v_lshlrev_b32 v6, 5, v5\nv_lshl_add_u32 v6, v4, 2, v6')
    k('s_lshl_b32 s3, s21, 9\ns_lshl_b32 s4, s20, 7\ns_add_u32 s3, s3, s4\ns_add_u32 s3, s3, s63')
    k('s_mov_b32 exec_lo, 0x00ff00ff\ns_mov_b32 exec_hi, 0x00ff00ff')
    k(f'buffer_atomic_add_f32 v32, v6, {WS}, s3 offen sc1')
    k('a2_end:\ns_endpgm')
    return k

def dma_voffs(k, stride, base):
    k(f'v_lshrrev_b32 v28, 3, v1\nv_mul_u32_u24 v{base}, {stride}, v28')
    k(f'v_bfe_u32 v28, v1, 4, 2\nv_lshlrev_b32 v28, 1, v28\nv_and_b32 v29, 7, v1\nv_xor_b32 v28, v28, v29\nv_lshl_add_u32 v{base}, v28, 4, v{base}')
    for n in range(1, 4):
        k(f'v_add_u32 v{base+n}, {n*(8*stride-1024)}, v{base}')

def tr_addrs(k, base, rot, sring):
    k(f'v_lshrrev_b32 v28, 2, v1\nv_lshlrev_b32 v28, 7, v28\nv_and_b32 v29, 3, v1\nv_lshl_add_u32 v28, v29, 3, v28\nv_add_u32 v28, {sring}, v28')
    k('v_bfe_u32 v29, v1, 3, 2')
    for n in range(4):
        if rot: k(f's_add_u32 s3, s20, {n}\ns_and_b32 s3, s3, 3\nv_xor_b32 v30, s3, v29')
        else: k(f'v_xor_b32 v30, {n}, v29')
        k(f'v_lshl_add_u32 v{base+n}, v30, 5, v28')

def b1_stub(k, layer):
    k(f's_mov_b32 s60, {XT[layer]}\ns_mov_b32 s61, {STB[layer]}\ns_mov_b32 s62, {UB[layer]}')

def gen_b1(RD=6):
    k = K('b1')
    prologue(k, 240, [(8, 88, WS_BYTES), (12, 40, 2048*1536*2), (16, 48, 1536*2)])
    k('s_lshr_b32 s3, s2, 3\ns_mul_i32 s4, s3, 205\ns_lshr_b32 s4, s4, 10\ns_mul_i32 s5, s4, 5\ns_sub_u32 s3, s3, s5')
    k('s_and_b32 s5, s2, 1\ns_mul_i32 s5, s5, 5\ns_add_u32 s21, s3, s5\ns_bfe_u32 s5, s2, 0x20001\ns_mul_i32 s5, s5, 6\ns_add_u32 s22, s4, s5')
    k('v_lshlrev_b32 v2, 4, v1\nv_and_b32 v4, 15, v1\nv_lshrrev_b32 v5, 4, v1')
    WV = (RD + 1) * 4096
    k(f's_mul_i32 s23, s20, {WV}')
    k('s_lshl_b32 s3, s20, 12\ns_add_u32 s24, s3, s61')
    ST = 208
    for q in range(4): k.mem('buffer_load_dwordx4', V(ST+4*q, 4), 'v2', WS, 's24', 1024*q, tag='st')
    dma_voffs(k, 3072, 8)
    k('s_mul_i32 s25, s20, 1572864\ns_lshl_b32 s3, s22, 7\ns_add_u32 s25, s25, s3\ns_add_u32 s26, s23, 4096')
    for n in range(4):
        k(f's_add_u32 s3, s20, {n}\ns_and_b32 s3, s3, 3\ns_lshl_b32 s4, s21, 2\ns_add_u32 s3, s3, s4\ns_lshl_b32 s3, s3, 16\ns_lshl_b32 s4, s20, 14\ns_add_u32 s3, s3, s4\ns_add_u32 s{30+n}, s3, s60')
    k('v_add_u32 v16, 4096, v2\nv_add_u32 v17, 8192, v2\nv_add_u32 v18, 12288, v2')
    XR = 32
    def loads(s):
        sl = s % RD
        k(f's_add_u32 m0, s26, {4096*sl}\ns_add_u32 s27, s25, {98304*s}')
        for n in range(4):
            k(f'buffer_load_dwordx4 v{8+n}, s[12:15], s27 offen offset:{1024*n} lds'); k.issue(('s', s))
        vo = ('v2', 'v16', 'v17', 'v18')[s >> 2]
        for n in range(4):
            k.mem('buffer_load_dwordx4', V(XR+16*sl+4*n, 4), vo, WS, f's{30+n}', 1024*(s & 3), tag=('s', s))
    for s in range(RD): loads(s)
    k('v_lshlrev_b32 v19, 3, v5\ns_lshl_b32 s28, s22, 7')
    B1R = 224
    for t in range(4): k.mem('buffer_load_dwordx2', V(B1R+2*t, 2), 'v19', 's[16:19]', 's28', 32*t, tag='b1')
    tr_addrs(k, 12, False, 's26')
    k('v_lshl_add_u32 v20, v5, 4, s23\nv_lshl_add_u32 v21, v1, 3, s23')
    k.vmwait('st')
    for q in range(4):
        for e in range(2):
            S_, Q_ = ST+4*q+2*e, ST+4*q+2*e+1
            k(f'v_mul_f32 v{S_}, {fhex(1/640)}, v{S_}\nv_mul_f32 v{Q_}, {fhex(1/640)}, v{Q_}\nv_fma_f32 v{Q_}, -v{S_}, v{S_}, v{Q_}\nv_max_f32 v{Q_}, 0, v{Q_}')
            k(f'v_add_f32 v22, {fhex(1e-5)}, v{Q_}\nv_rsq_f32 v22, v22')
            k(f'v_mul_f32 v{Q_}, v{Q_}, v22\nv_mov_b32 v23, {fhex(1e-5)}\nv_fma_f32 v23, v{Q_}, v22, v23\nv_rsq_f32 v23, v23')
            k(f'v_mul_f32 v{24+e}, v22, v23\nv_mul_f32 v{26+e}, v{24+e}, -v{S_}')
        k(f'ds_write_b64 v21, v[24:25] offset:{512*q}\nds_write_b64 v21, v[26:27] offset:{2048+512*q}')
    WFR = 128
    SR = 160
    H = 192
    acc = lambda n, t: A(16*n + 4*t, 4)
    def rd(s):
        sl = s % RD; b = s & 1
        for hf in range(2):
            k(f'ds_read_b128 {V(SR+16*b+4*hf,4)}, v20 offset:{128*s+64*hf}\nds_read_b128 {V(SR+16*b+8+4*hf,4)}, v20 offset:{2048+128*s+64*hf}')
        for t in range(4):
            for hf in range(2):
                k(f'ds_read_b64_tr_b16 {V(WFR+16*b+4*t+2*hf,2)}, v{12+t} offset:{4096*sl+2048*hf}')
    k('s_mov_b32 s29, 0xffff0000')
    k.vmwait(('s', 0)); k('s_waitcnt lgkmcnt(0)'); rd(0)
    for s in range(16):
        sl = s % RD; b = s & 1
        if s + 1 < 16:
            k.vmwait(('s', s+1))
            k('s_waitcnt lgkmcnt(0)')
            rd(s+1)
        else:
            k('s_waitcnt lgkmcnt(0)')
        for n in range(4):
            for j in range(4):
                x = XR + 16*sl + 4*n + j
                tl, th = 232 + 2*(j & 1) , 233 + 2*(j & 1)
                k(f'v_lshlrev_b32 v{tl}, 16, v{x}\nv_and_b32 v{th}, s29, v{x}')
                k(f'v_fma_f32 v{tl}, v{tl}, v{SR+16*b+2*j}, v{SR+16*b+8+2*j}\nv_fma_f32 v{th}, v{th}, v{SR+16*b+2*j+1}, v{SR+16*b+8+2*j+1}')
                k(f'v_cvt_pk_bf16_f32 v{H+4*n+j}, v{tl}, v{th}')
                if n > 0:
                    t = j
                    k(f'v_mfma_f32_16x16x32_bf16 {acc(n-1,t)}, {V(WFR+16*b+4*t,4)}, {V(H+4*(n-1),4)}, {acc(n-1,t) if s else 0}')
        if s + RD < 16: loads(s + RD)
        for t in range(4):
            k(f'v_mfma_f32_16x16x32_bf16 {acc(3,t)}, {V(WFR+16*b+4*t,4)}, {V(H+12,4)}, {acc(3,t) if s else 0}')
    OUT = 32; T = 48
    reduce4(k, acc, 4, 4*WV, T, 8, 11, OUT)
    KC = 2*0.7978845608028654*LOG2E
    k(f's_mov_b32 s4, {fhex(-KC*0.044715)}\ns_mov_b32 s5, {fhex(-KC)}')
    for t in range(4):
        for j in range(2):
            k(f'v_lshlrev_b32 v{T+4*t+2*j}, 16, v{B1R+2*t+j}\nv_and_b32 v{T+4*t+2*j+1}, s29, v{B1R+2*t+j}')
    for j in range(0, 16, 2): k(f'v_pk_add_f32 {V(OUT+j,2)}, {V(OUT+j,2)}, {V(T+j,2)}')
    for j in range(16): k(f'v_mul_f32 v{T+j}, v{OUT+j}, v{OUT+j}')
    k('v_mov_b32 v28, s5')
    for j in range(16): k(f'v_fma_f32 v{T+j}, v{T+j}, s4, v28')
    for j in range(16): k(f'v_mul_f32 v{T+j}, v{T+j}, v{OUT+j}')
    for j in range(16): k(f'v_exp_f32 v{T+j}, v{T+j}')
    for j in range(16): k(f'v_add_f32 v{T+j}, 1.0, v{T+j}')
    for j in range(16): k(f'v_rcp_f32 v{T+j}, v{T+j}')
    for j in range(16): k(f'v_mul_f32 v{T+j}, v{T+j}, v{OUT+j}')
    for j in range(8): k(f'v_cvt_pk_bf16_f32 v{OUT+j}, v{T+2*j}, v{T+2*j+1}')
    k('s_lshl_b32 s3, s21, 2\ns_add_u32 s3, s3, s20\ns_mul_i32 s3, s3, 49152\ns_lshl_b32 s4, s22, 11\ns_add_u32 s3, s3, s4\ns_add_u32 s3, s3, s62')
    k(f'buffer_store_dwordx4 {V(OUT,4)}, v2, {WS}, s3 offen sc1\nbuffer_store_dwordx4 {V(OUT+4,4)}, v2, {WS}, s3 offen offset:1024 sc1')
    k('b1_end:\ns_endpgm')
    k.lds = 4*WV + 48*1024
    return k

def b2_stub(k, layer):
    k(f's_mov_b32 s60, {UB[layer]}\ns_mov_b32 s61, {XT[layer]}\ns_mov_b32 s62, {XN[1]}\ns_mov_b32 s63, {STA[1]}\ns_mov_b32 s64, {layer}')

def gen_b2(RD=6):
    k = K('b2')
    prologue(k, 256, [(8, 88, WS_BYTES), (12, 56, 2048*1536*2), (16, 64, 2048*2), (40, 72, 2048*640*2)])
    map_8x4(k)
    k('v_lshlrev_b32 v2, 4, v1\nv_and_b32 v4, 15, v1\nv_lshrrev_b32 v5, 4, v1')
    WV = RD * 4096
    k(f's_mul_i32 s26, s20, {WV}')
    dma_voffs(k, 4096, 8)
    k('s_mul_i32 s25, s20, 1572864\ns_lshl_b32 s3, s21, 7\ns_add_u32 s25, s25, s3')
    k('s_mul_i32 s3, s22, 245760\ns_mul_i32 s4, s20, 12288\ns_add_u32 s3, s3, s4\ns_add_u32 s30, s3, s60')
    for c in range(1, 5): k(f's_add_u32 s{30+c}, s30, {49152*c}')
    k('v_add_u32 v16, 4096, v2\nv_add_u32 v17, 8192, v2')
    def loads(s):
        sl = s % RD
        k(f's_add_u32 m0, s26, {4096*sl}\ns_add_u32 s27, s25, {131072*s}')
        for n in range(4):
            k(f'buffer_load_dwordx4 v{8+n}, s[12:15], s27 offen offset:{1024*n} lds'); k.issue(('s', s))
        vo = ('v2', 'v16', 'v17')[s >> 2]
        for c in range(5):
            k.mem('buffer_load_dwordx4', A(20*sl+4*c, 4), vo, WS, f's{30+c}', 1024*(s & 3), tag=('s', s))
    for s in range(RD): loads(s)
    k('s_lshr_b32 s3, s20, 1\ns_lshl_b32 s23, s21, 1\ns_add_u32 s23, s23, s3\ns_and_b32 s24, s20, 1')
    k('s_mul_i32 s3, s22, 327680\ns_lshl_b32 s4, s23, 10\ns_add_u32 s3, s3, s4\ns_add_u32 s28, s3, s61')
    RF = 144
    k.inval()
    for c in range(5): k.mem('buffer_load_dwordx4', V(RF+4*c, 4), 'v2', WS, 's28', 65536*c, tag='r')
    k('v_lshlrev_b32 v18, 1, v4\ns_lshl_b32 s3, s21, 7\ns_lshl_b32 s4, s20, 5\ns_add_u32 s29, s3, s4')
    k.mem('buffer_load_ushort', 'v19', 'v18', 's[16:19]', 's29', 0, tag='r')
    tr_addrs(k, 12, True, 's26')
    k('v_and_b32 v28, 1, v4\nv_cmp_eq_u32 vcc, 1, v28\nv_mov_b32 v28, 0x3f80\nv_mov_b32 v29, 0x3f800000\nv_cndmask_b32 v28, v28, v29, vcc')
    k('v_lshrrev_b32 v29, 2, v4\nv_cmp_eq_u32 vcc, v29, v5\nv_cndmask_b32 v28, 0, v28, vcc')
    k('v_bfe_u32 v29, v4, 1, 1\ns_lshl_b32 s3, s24, 1\nv_add_u32 v29, s3, v29')
    for r in range(4): k(f'v_cmp_eq_u32 vcc, {r}, v29\nv_cndmask_b32 v{20+r}, 0, v28, vcc')
    ACC = 32; WFR = 112
    acc = lambda n, c: V(ACC + 20*n + 4*c, 4)
    def rd(s):
        sl = s % RD; b = s & 1
        for t in range(4):
            for hf in range(2):
                k(f'ds_read_b64_tr_b16 {V(WFR+16*b+4*t+2*hf,2)}, v{12+t} offset:{4096*sl+2048*hf}')
    k.vmwait(('s', 0)); rd(0)
    for s in range(12):
        sl = s % RD; b = s & 1
        if s + 1 < 12:
            k.vmwait(('s', s+1)); k('s_waitcnt lgkmcnt(0)'); rd(s+1)
        else: k('s_waitcnt lgkmcnt(0)')
        for n in range(4):
            for c in range(5):
                k(f'v_mfma_f32_16x16x32_bf16 {acc(n,c)}, {A(20*sl+4*c,4)}, {V(WFR+16*b+4*n,4)}, {acc(n,c) if s else 0}')
        if s + RD < 12: loads(s + RD)
    for c in range(5):
        k(f'v_mfma_f32_16x16x32_bf16 {acc(0,c)}, {V(RF+4*c,4)}, v[20:23], {acc(0,c)}')
    OUT = 112; T = 164
    k('v_lshlrev_b32 v24, 16, v19')
    reduce4(k, acc, 5, 4*WV, T, 8, 11, OUT)
    for j in range(0, 20, 2): k(f'v_pk_add_f32 {V(OUT+j,2)}, {V(OUT+j,2)}, v[24:25] op_sel_hi:[1,0]')
    for j in range(10): k(f'v_cvt_pk_bf16_f32 v{T+j}, v{OUT+2*j}, v{OUT+2*j+1}')
    k('s_cmp_eq_u32 s64, 1\ns_cbranch_scc1 b2_final')
    k('v_lshrrev_b32 v6, 1, v5\nv_lshlrev_b32 v6, 9, v6\nv_lshl_add_u32 v6, v4, 4, v6\nv_and_b32 v7, 1, v5\nv_lshl_add_u32 v6, v7, 3, v6')
    k('s_mul_i32 s3, s23, 40960\ns_mul_i32 s4, s22, 5120\ns_add_u32 s3, s3, s4\ns_lshl_b32 s4, s24, 8\ns_add_u32 s3, s3, s4\ns_add_u32 s28, s3, s62')
    k.inval()
    for c in range(5): k.mem('buffer_store_dwordx2', V(T+2*c, 2), 'v6', WS, 's28', 1024*c, 'sc1')
    k(f'v_pk_add_f32 v[32:33], {V(OUT,2)}, {V(OUT+2,2)}\nv_pk_mul_f32 v[34:35], {V(OUT,2)}, {V(OUT,2)}')
    for j in range(2, 20, 2):
        if j >= 4: k(f'v_pk_add_f32 v[32:33], v[32:33], {V(OUT+j,2)}')
        k(f'v_pk_fma_f32 v[34:35], {V(OUT+j,2)}, {V(OUT+j,2)}, v[34:35]')
    k('v_add_f32 v32, v32, v33\nv_add_f32 v34, v34, v35')
    k('v_mov_b32 v33, v32\nv_mov_b32 v35, v34\nv_permlane16_swap_b32 v32, v33\nv_permlane16_swap_b32 v34, v35\nv_add_f32 v32, v32, v33\nv_add_f32 v34, v34, v35')
    k('v_mov_b32 v33, v32\nv_mov_b32 v35, v34\nv_permlane32_swap_b32 v32, v33\nv_permlane32_swap_b32 v34, v35\nv_add_f32 v32, v32, v33\nv_add_f32 v34, v34, v35')
    k('v_cmp_eq_u32 vcc, 1, v5\nv_cndmask_b32 v32, v32, v34, vcc\nv_lshlrev_b32 v6, 3, v4\nv_lshl_add_u32 v6, v5, 2, v6')
    k('s_lshl_b32 s3, s29, 2\ns_add_u32 s3, s3, s63\ns_mov_b32 exec_hi, 0')
    k(f'buffer_atomic_add_f32 v32, v6, {WS}, s3 offen sc1')
    k('s_endpgm\nb2_final:')
    k('v_mul_u32_u24 v6, 1280, v4\nv_lshl_add_u32 v6, v5, 3, v6\ns_mul_i32 s3, s29, 640\ns_mul_i32 s4, s22, 160\ns_add_u32 s3, s3, s4')
    for c in range(5): k(f'buffer_store_dwordx2 {V(T+2*c,2)}, v6, s[40:43], s3 offen offset:{32*c}')
    k('b2_end:\ns_endpgm')
    k.lds = 4*WV + 60*1024
    return k
```

```python
import re

TRANS = ('v_exp_f32','v_log_f32','v_rcp_f32','v_rsq_f32','v_sqrt_f32','v_sin_f32','v_cos_f32','v_rcp_iflag_f32')
_reg = re.compile(r'\b([vas])(?:\[(\d+):(\d+)\]|(\d+)\b)')

def regs_of(op):
    out = set()
    for m in _reg.finditer(op):
        k = m.group(1)
        if m.group(2) is not None:
            for i in range(int(m.group(2)), int(m.group(3)) + 1): out.add((k, i))
        else:
            out.add((k, int(m.group(4))))
    if re.search(r'\bvcc\b', op): out |= {('s', 'vcc')}
    if re.search(r'\bexec\b', op): out |= {('s', 'exec')}
    if re.search(r'\bm0\b', op): out |= {('s', 'm0')}
    return out

class Ins:
    def __init__(s, text):
        s.text = text
        t = text.split(';')[0].strip()
        s.label = t.endswith(':')
        s.directive = t.startswith('.') and not s.label
        s.empty = (t == '')
        s.mn = ''; s.dst = set(); s.src = set(); s.srcC = set(); s.ab = set()
        if s.label or s.directive or s.empty: return
        p = t.split(None, 1)
        s.mn = mn = p[0]
        rest = p[1] if len(p) > 1 else ''
        ops = [o.strip() for o in re.split(r',(?![^\[]*\])', rest)]
        s.ops = ops
        s.valu = mn.startswith('v_') and not mn.startswith('v_mfma') and not mn.startswith('v_smfmac')
        s.mfma = mn.startswith('v_mfma')
        s.salu = mn.startswith('s_')
        s.vmem = mn.startswith(('buffer_', 'global_', 'flat_'))
        s.ds = mn.startswith('ds_')
        s.trans = mn.split('_e')[0] in TRANS or mn in TRANS
        s.dot = mn.startswith('v_dot')
        s.dpp = any(k in rest for k in ('row_shr', 'row_shl', 'row_ror', 'quad_perm', 'row_bcast', 'row_mirror', 'row_half_mirror', 'wave_', 'row_newbcast'))
        s.perml = mn.startswith('v_permlane')
        s.rdlane = mn.startswith(('v_readfirstlane', 'v_readlane', 'v_writelane'))
        s.lds_dma = s.vmem and re.search(r'\blds\b', rest) is not None
        s.passes = 0
        if s.mfma:
            s.passes = 8 if '32x32' in mn else 4
            s.dst = regs_of(ops[0]); s.ab = regs_of(ops[1]) | regs_of(ops[2]); s.srcC = regs_of(ops[3].split()[0]) if len(ops) > 3 else set()
            s.src = s.ab | s.srcC
        elif s.valu:
            if mn.startswith('v_cmp'):
                s.dst = regs_of(ops[0]); s.src = set().union(*[regs_of(o) for o in ops[1:]])
                if mn.startswith('v_cmpx'): s.dst |= {('s', 'exec')}
            elif s.perml and 'swap' in mn:
                s.dst = regs_of(ops[0]) | regs_of(ops[1]); s.src = set(s.dst)
            elif '_co_' in mn or mn.startswith('v_div_scale'):
                s.dst = regs_of(ops[0]) | regs_of(ops[1]); s.src = set().union(*[regs_of(o) for o in ops[2:]])
            else:
                s.dst = regs_of(ops[0]); s.src = set().union(*[regs_of(o) for o in ops[1:]]) if len(ops) > 1 else set()
                if mn.startswith(('v_fmac', 'v_mac', 'v_dot2c', 'v_writelane')) or s.dpp or 'op_sel' in rest or 'sdwa' in mn: s.src |= s.dst
                if mn.startswith('v_cndmask') and len(ops) == 3: s.src |= {('s', 'vcc')}
        elif s.vmem:
            allr = [regs_of(o) for o in ops]
            if 'store' in mn or ('atomic' in mn):
                s.src = set().union(*allr); s.store_data = allr[0] if mn.startswith('buffer_') else (allr[1] if len(allr) > 1 else set())
                s.wide = 'x3' in mn or 'x4' in mn
            elif s.lds_dma:
                s.src = set().union(*allr) | {('s', 'm0')}
            else:
                s.dst = allr[0]; s.src = set().union(*allr[1:])
        elif s.ds:
            allr = [regs_of(o) for o in ops]
            if mn.startswith(('ds_read', 'ds_bpermute', 'ds_permute', 'ds_swizzle')):
                s.dst = allr[0]; s.src = set().union(*allr[1:])
            else:
                s.src = set().union(*allr)
        elif s.salu:
            if mn.startswith(('s_cmp', 's_waitcnt', 's_nop', 's_barrier', 's_branch', 's_cbranch', 's_endpgm', 's_sleep', 's_setprio', 's_bitcmp')):
                s.src = set().union(*[regs_of(o) for o in ops]) if ops else set()
            else:
                s.dst = regs_of(ops[0]); s.src = set().union(*[regs_of(o) for o in ops[1:]]) if len(ops) > 1 else set()
                if 'saveexec' in mn: s.dst |= {('s', 'exec')}
    def states(s):
        if s.label or s.directive or s.empty: return 0
        if s.mn == 's_nop': return int(s.ops[0]) + 1
        return 1

def isv(r): return r[0] in 'va'
def need(p, c):
    n = 0
    if p.mfma:
        d = p.dst
        if c.mfma:
            if d & c.ab: n = max(n, 12 if p.passes == 8 else 8)
            if d & c.srcC and not (c.srcC == d and c.passes == p.passes): n = max(n, 10 if p.passes == 8 else 6)
            if d & c.dst and not (d & c.srcC): n = max(n, 12 if p.passes == 8 else 8)
        elif (c.valu or c.vmem or c.ds) and (d & (c.src | c.dst)): n = max(n, 12 if p.passes == 8 else 8)
        if c.valu and (p.srcC & c.dst): n = max(n, 7 if p.passes == 8 else 3)
    if p.valu:
        vd = {r for r in p.dst if isv(r)}; sd = {r for r in p.dst if r[0] == 's'}
        if c.mfma and (vd & c.src): n = max(n, 3 if p.dot else 2)
        if c.mfma and ('s', 'exec') in sd: n = max(n, 4)
        if c.valu:
            if p.trans and not c.trans and (vd & c.src): n = max(n, 1)
            if p.trans and c.trans and (vd & c.src): n = max(n, 1)
            if c.dpp and (vd & c.src): n = max(n, 2)
            if c.dpp and ('s', 'exec') in sd: n = max(n, 5)
            if c.perml and (vd & c.src): n = max(n, 2)
            if c.rdlane and (vd & c.src): n = max(n, 1)
            if c.rdlane and (sd & c.src): n = max(n, 4)
            if (c.rdlane or c.perml) and ('s', 'exec') in sd: n = max(n, 4)
            if sd & c.src: n = max(n, 2)
            if p.dot and (vd & (c.src | c.dst)):
                srcC_only = (c.mn == p.mn)
                if srcC_only:
                    a_b = regs_of(c.ops[1]) | regs_of(c.ops[2])
                    if vd & a_b: n = max(n, 3)
                else: n = max(n, 3)
            if ('op_sel' in p.text or 'sdwa' in p.mn) and (vd & (c.src | c.dst)): n = max(n, 1)
        if (c.vmem or c.ds) and p.dot and (vd & c.src): n = max(n, 3)
        if (c.vmem or c.ds) and p.trans and (vd & c.src): n = max(n, 1)
        if c.vmem and (sd & c.src): n = max(n, 5)
        if c.salu and (sd & c.src): n = max(n, 1)
    if p.salu and ('s', 'm0') in p.dst and c.vmem and c.lds_dma: n = max(n, 1)
    if p.salu and ('s', 'exec') in p.dst and c.valu and c.dpp: n = max(n, 1)
    if p.vmem and getattr(p, 'wide', False) and (p.store_data & c.dst): n = max(n, 2)
    if p.ds and p.mn.startswith(('ds_write_b128', 'ds_write_b96')) and c.valu and (p.src & c.dst): n = max(n, 2)
    return n

def fix_hazards(lines):
    out = []; hist = []
    for text in lines:
        c = Ins(text)
        if c.label or c.directive or c.empty:
            out.append(text)
            continue
        dist = 0; req = 0
        for p in reversed(hist):
            if dist >= 12: break
            r = need(p, c) - dist
            if r > req: req = r
            dist += p.states()
        while req > 0:
            k = min(req, 16)
            nop = Ins(f's_nop {k-1}'); out.append(nop.text); hist.append(nop); req -= k
        out.append(text); hist.append(c)
        if len(hist) > 32: hist = hist[-16:]
    return out

class K:
    def __init__(s, name):
        s.name = name; s.L = []; s.vm = []; s.tmp_s = 99; s.tmpval = None; s.uid = 0
    def __call__(s, txt):
        for t in txt.split('\n'):
            t = t.strip()
            if t: s.L.append(t)
    def lab(s, base):
        s.uid += 1; return f'{s.name}_{base}{s.uid}'
    def issue(s, tag=None): s.vm.append(tag)
    def vmwait(s, tag):
        idx = max(i for i, t in enumerate(s.vm) if t == tag)
        n = len(s.vm) - 1 - idx
        s(f's_waitcnt vmcnt({min(n, 63)})')
    def vmwait0(s):
        s('s_waitcnt vmcnt(0)')
    def soff(s, sbase, const):
        hi = const & ~4095; lo = const & 4095
        if hi == 0:
            return (sbase if sbase else '0'), lo
        key = (sbase, hi)
        if s.tmpval != key:
            if sbase: s(f's_add_u32 s{s.tmp_s}, {sbase}, {hi}')
            else: s(f's_mov_b32 s{s.tmp_s}, {hi}')
            s.tmpval = key
        return f's{s.tmp_s}', lo
    def inval(s): s.tmpval = None
    def mem(s, op, data, voff, srd, sbase, const=0, mods='', tag=None):
        so, imm = s.soff(sbase, const)
        o = f' offset:{imm}' if imm else ''
        d = f'{data}, ' if data else ''
        s(f'{op} {d}{voff}, {srd}, {so} offen{o} {mods}'.rstrip())
        s.issue(tag)

def R(k, a, n=1):
    return f'{k}{a}' if n == 1 else f'{k}[{a}:{a+n-1}]'
def V(a, n=1): return R('v', a, n)
def A(a, n=1): return R('a', a, n)
def S(a, n=1): return R('s', a, n)

KD = """.p2align 6
.amdhsa_kernel {name}
  .amdhsa_next_free_vgpr {nv}
  .amdhsa_next_free_sgpr 102
  .amdhsa_accum_offset {acc}
  .amdhsa_group_segment_fixed_size 0
  .amdhsa_kernarg_size 96
  .amdhsa_user_sgpr_count 2
  .amdhsa_user_sgpr_kernarg_segment_ptr 1
  .amdhsa_system_sgpr_workgroup_id_x 1
.end_amdhsa_kernel"""
```

```python
from asmlib import *
from layout import *

def srd(k, s, off, nbytes):
    k(f's_mov_b32 s{s+2}, {nbytes}\ns_mov_b32 s{s+3}, 0x20000')

def prologue(k, nwg, ptrs):
    k.stamp()
    k(f's_cmp_ge_u32 s2, {nwg}\ns_cbranch_scc1 {k.name}_end')
    for s, off, nb in ptrs:
        k(f's_load_dwordx2 s[{s}:{s+1}], s[0:1], {off}')
    k('v_lshrrev_b32 v2, 6, v0\nv_and_b32 v1, 63, v0\nv_readfirstlane_b32 s20, v2')
    for s, off, nb in ptrs:
        srd(k, s, off, nb)
    k('s_waitcnt lgkmcnt(0)')

N_WP, N_X, N_WO, N_Z = 80, 128, 50, 1
K0_WGS = N_WP + N_X + N_WO + N_Z

def perm_row(k, dst, n, t1, t2):
    k(f'v_and_b32 {dst}, 19, {n}')
    k(f'v_bfe_u32 {t1}, {n}, 2, 1\nv_bfe_u32 {t2}, {n}, 3, 1')
    k(f'v_lshl_or_b32 {dst}, {t1}, 3, {dst}\nv_lshl_or_b32 {dst}, {t2}, 2, {dst}')

def gen_k0():
    k = K('k0')
    prologue(k, K0_WGS, [(8, 88, WS_BYTES), (12, 8, 640*1920*2), (16, 16, 32*400*2), (24, 24, 640*640*2), (28, 0, 2048*640*2)])
    k(f's_cmp_ge_u32 s2, {N_WP}\ns_cbranch_scc1 k0_notwp')
    k('s_mul_i32 s21, s2, 205\ns_lshr_b32 s21, s21, 10\ns_mul_i32 s22, s21, 5\ns_sub_u32 s22, s2, s22')
    k('s_lshl_b32 s23, s22, 2\ns_add_u32 s23, s23, s20')
    k('v_and_b32 v2, 31, v1\nv_lshrrev_b32 v3, 5, v1')
    perm_row(k, 'v4', 'v2', 'v5', 'v6')
    k('s_lshl_b32 s3, s23, 5\nv_add_u32 v4, s3, v4\nv_mul_u32_u24 v4, 3840, v4')
    k('v_add_u32 v5, 64, v4\nv_lshl_add_u32 v4, v3, 4, v4')
    k('s_mul_i32 s4, s21, 80\ns_add_u32 s5, s4, 1280\ns_add_u32 s6, s4, 2560')
    AF = {'k': 32, 'v': 44, 'q': 56}
    for seg, so in (('k', 's5'), ('v', 's6'), ('q', 's4')):
        for st in range(3):
            r = AF[seg] + 4*st
            if st < 2: k.mem('buffer_load_dwordx4', V(r, 4), 'v4', 's[12:15]', so, 32*st, tag='A'+seg)
            else: k.mem('buffer_load_dwordx4', V(r, 4), 'v5', 's[12:15]', so, 0, tag='A'+seg)
    k('s_mul_i32 s7, s21, 1600\nv_lshlrev_b32 v6, 3, v0')
    k.mem('buffer_load_dwordx2', 'v[8:9]', 'v6', 's[16:19]', 's7', 0, tag='phi')
    k('v_mov_b32 v12, 0\nv_mov_b32 v13, 0\nv_mov_b32 v14, 0\nv_mov_b32 v15, 0\nv_lshlrev_b32 v7, 4, v0')
    k('ds_write_b128 v7, v[12:15]\nds_write_b128 v7, v[12:15] offset:4096')
    k('v_cmp_le_u32 vcc, 100, v0\nv_cndmask_b32 v10, 0, 1, vcc')
    k('v_mul_u32_u24 v11, 100, v10\nv_sub_u32 v11, v0, v11')
    k('v_mul_u32_u24 v16, 205, v11\nv_lshrrev_b32 v16, 10, v16')
    k('v_mul_u32_u24 v17, 5, v16\nv_sub_u32 v17, v11, v17')
    k('v_mul_u32_u24 v17, 384, v17\nv_mul_u32_u24 v18, 1960, v10')
    k('v_add_u32 v17, v17, v18\nv_lshl_add_u32 v17, v16, 1, v17')
    k('v_mul_u32_u24 v18, 98, v0\nv_add_u32 v18, 3840, v18\nv_mov_b32 v19, 0x3f80')
    k('v_lshrrev_b32 v20, 3, v2\nv_bfe_u32 v21, v2, 2, 1\nv_and_b32 v22, 3, v2')
    k('v_mul_u32_u24 v21, 20, v21\nv_add_u32 v21, v21, v22\nv_mul_u32_u24 v21, 96, v21')
    k('v_lshlrev_b32 v23, 4, v3\nv_add_u32 v21, v21, v23\nv_add_u32 v23, 7680, v23')
    combos = [(0, 'k'), (1, 'k'), (1, 'v'), (2, 'v'), (2, 'q'), (3, 'q')]
    G0 = {'k': 0, 'v': 5, 'q': 10}
    for ci, (T, seg) in enumerate(combos):
        r = 24 + ci
        k(f'v_add_u32 v22, {4*T - G0[seg]}, v20')
        k(f'v_cmp_gt_u32 vcc, 5, v22')
        k(f'v_mul_u32_u24 v22, 384, v22\nv_add_u32 v22, v22, v21')
        if seg == 'v': k('v_add_u32 v22, 3840, v22')
        k(f'v_cndmask_b32 v{r}, v23, v22, vcc')
    k('s_waitcnt lgkmcnt(0)\ns_barrier')
    k.vmwait('phi')
    k('v_cmp_gt_u32 vcc, 200, v0\ns_and_saveexec_b64 s[40:41], vcc\ns_cbranch_execz k0_nophi')
    k('ds_write_b16 v17, v8\nds_write_b16_d16_hi v17, v8 offset:96\nds_write_b16 v17, v9 offset:192\nds_write_b16_d16_hi v17, v9 offset:288')
    k('v_cmp_gt_u32 vcc, 40, v0\ns_and_b64 exec, exec, vcc\ns_cbranch_execz k0_nophi')
    k('ds_write_b16 v18, v19')
    k('k0_nophi:\ns_mov_b64 exec, -1')
    k('s_waitcnt lgkmcnt(0)\ns_barrier')
    BF = 68
    for ci in range(6):
        for st in range(3):
            k(f'ds_read_b128 {V(BF + 12*ci + 4*st, 4)}, v{24+ci} offset:{32*st}')
        if ci == 3: k('s_waitcnt lgkmcnt(8)')
    ACC = 144
    k('s_waitcnt lgkmcnt(0)')
    k.vmwait('Aq')
    first = set()
    for st in range(3):
        for ci, (T, seg) in enumerate(combos):
            c = V(ACC + 16*T, 16)
            src = c if T in first else '0'
            first.add(T)
            k(f'v_mfma_f32_32x32x16_bf16 {c}, {V(AF[seg]+4*st,4)}, {V(BF+12*ci+4*st,4)}, {src}')
    k(f's_mul_i32 s32, s21, {WP_STRIDE}\ns_mul_i32 s33, s23, 6144\ns_add_u32 s33, s33, s32')
    k(f's_lshl_b32 s34, s23, 11\ns_add_u32 s34, s34, s32\ns_add_u32 s34, s34, 122880')
    k('v_lshlrev_b32 v4, 4, v1\nv_mov_b32 v5, 0x3f803f80')
    PK = 32
    for T in range(4):
        for r in range(8):
            k(f'v_cvt_pk_bf16_f32 v{PK+8*T+r}, v{ACC+16*T+2*r}, v{ACC+16*T+2*r+1}')
        for s in range(2):
            if T < 3: k.mem('buffer_store_dwordx4', V(PK+8*T+4*s, 4), 'v4', 's[8:11]', 's33', s*3072 + T*1024, 'sc1')
            else: k.mem('buffer_store_dwordx4', V(PK+8*T+4*s, 4), 'v4', 's[8:11]', 's34', s*1024, 'sc1')
    for T in range(4): k(f'v_mov_b32 v{8+T}, 0')
    for r in range(8):
        for T in range(4):
            k(f'v_dot2c_f32_bf16 v{8+T}, v{PK+8*T+r}, v5')
    k('s_lshl_b32 s3, s20, 10\nv_lshl_add_u32 v6, v1, 2, s3')
    for T in range(4): k(f'ds_write_b32 v6, v{8+T} offset:{8192+256*T}')
    k('s_lshl_b32 s3, s20, 8\nv_lshl_add_u32 v6, v2, 2, s3')
    k('s_waitcnt lgkmcnt(0)\ns_barrier')
    for w in range(4):
        k(f'ds_read2_b32 {V(12+2*w,2)}, v6 offset0:0 offset1:32' if False else f'ds_read_b32 v{12+2*w}, v6 offset:{8192+1024*w}\nds_read_b32 v{13+2*w}, v6 offset:{8192+1024*w+128}')
    k('s_waitcnt lgkmcnt(0)')
    k('v_add_f32 v12, v12, v13\nv_add_f32 v14, v14, v15\nv_add_f32 v16, v16, v17\nv_add_f32 v18, v18, v19')
    k('v_add_f32 v12, v12, v14\nv_add_f32 v16, v16, v18\nv_add_f32 v12, v12, v16')
    k('v_cvt_pk_bf16_f32 v13, v12, v12\nv_lshlrev_b32 v14, 16, v13\nv_sub_f32 v14, v12, v14\nv_cvt_pk_bf16_f32 v14, v14, v14\nv_mov_b32 v15, 0')
    k('v_lshlrev_b32 v6, 4, v2')
    k(f's_lshl_b32 s3, s20, 10\ns_add_u32 s35, s32, s3\ns_add_u32 s35, s35, 163840')
    k('s_mul_i32 s36, s22, 3')
    k('s_mov_b64 exec, 0xffffffff')
    for j, r in enumerate((13, 14, 13)):
        k(f's_add_u32 s37, s36, {j}\ns_lshr_b32 s38, s37, 3\ns_lshl_b32 s38, s38, 9\ns_and_b32 s37, s37, 7\ns_lshl_b32 s37, s37, 1\ns_add_u32 s37, s37, s38\ns_add_u32 s37, s37, s35')
        k(f'buffer_store_short v{r}, v6, s[8:11], s37 offen sc1')
    k('s_cmp_lg_u32 s22, 4\ns_cbranch_scc1 k0_end')
    k('buffer_store_short v15, v6, s[8:11], s35 offen offset:526 sc1')
    k('s_endpgm')
    k(f'k0_notwp:\ns_cmp_ge_u32 s2, {N_WP+N_X}\ns_cbranch_scc1 k0_notx')
    k.inval()
    k(f's_sub_u32 s21, s2, {N_WP}')
    k('v_and_b32 v2, 15, v1\nv_lshrrev_b32 v3, 4, v1')
    k('v_mul_u32_u24 v4, 1280, v2\nv_lshl_add_u32 v4, v3, 4, v4')
    k('s_mul_i32 s4, s21, 20480\ns_mul_i32 s5, s20, 320\ns_add_u32 s4, s4, s5')
    for q in range(5):
        k.mem('buffer_load_dwordx4', V(32+4*q, 4), 'v4', 's[28:31]', 's4', 64*q, tag=f'x{q}')
    k('v_lshlrev_b32 v5, 9, v3\nv_lshl_add_u32 v5, v2, 4, v5')
    k(f's_lshr_b32 s6, s21, 1\ns_mul_i32 s6, s6, 40960\ns_and_b32 s7, s21, 1\ns_lshl_b32 s7, s7, 8\ns_add_u32 s6, s6, s7')
    k(f's_mul_i32 s7, s20, 10240\ns_add_u32 s6, s6, s7\ns_add_u32 s6, s6, {XN[0]}')
    k('v_mov_b32 v6, 0x3f803f80\nv_mov_b32 v8, 0\nv_mov_b32 v9, 0')
    for q in range(5):
        k.vmwait(f'x{q}')
        k.mem('buffer_store_dwordx4', V(32+4*q, 4), 'v5', 's[8:11]', 's6', 2048*q, 'sc1')
        for r in range(4):
            k(f'v_dot2c_f32_bf16 v8, v{32+4*q+r}, v6\nv_dot2c_f32_bf16 v9, v{32+4*q+r}, v{32+4*q+r}')
    k('v_lshlrev_b32 v7, 3, v0\nds_write_b64 v7, v[8:9]\nv_lshlrev_b32 v7, 3, v2')
    k('s_waitcnt lgkmcnt(0)\ns_barrier')
    k('s_cmp_lg_u32 s20, 0\ns_cbranch_scc1 k0_end')
    for j in range(16):
        k(f'ds_read_b64 {V(32+2*j,2)}, v7 offset:{128*j}')
        if j == 11: k('s_waitcnt lgkmcnt(4)')
    k('s_waitcnt lgkmcnt(0)')
    for st in (8, 4, 2, 1):
        for j in range(st):
            k(f'v_add_f32 v{32+2*j}, v{32+2*j}, v{32+2*(j+st)}\nv_add_f32 v{33+2*j}, v{33+2*j}, v{33+2*(j+st)}')
    k(f's_lshl_b32 s6, s21, 7\ns_add_u32 s6, s6, {STA[0]}\ns_mov_b64 exec, 0xffff')
    k('buffer_store_dwordx2 v[32:33], v7, s[8:11], s6 offen sc1')
    k('s_endpgm')
    k(f'k0_notx:\ns_cmp_ge_u32 s2, {N_WP+N_X+N_WO}\ns_cbranch_scc1 k0_notwo')
    k.inval()
    k(f's_sub_u32 s21, s2, {N_WP+N_X}\ns_lshl_b32 s21, s21, 2\ns_add_u32 s21, s21, s20')
    k('s_mul_i32 s22, s21, 205\ns_lshr_b32 s22, s22, 11\ns_mul_i32 s23, s22, 10\ns_sub_u32 s23, s21, s23')
    k('v_and_b32 v2, 31, v1\nv_lshrrev_b32 v3, 5, v1')
    perm_row(k, 'v4', 'v2', 'v5', 'v6')
    k('s_lshl_b32 s3, s22, 5\nv_add_u32 v4, s3, v4')
    k('v_mul_u32_u24 v5, 1639, v4\nv_lshrrev_b32 v5, 16, v5\nv_mul_u32_u24 v5, 40, v5\nv_sub_u32 v6, v4, v5')
    k('v_add_u32 v7, -16, v6\nv_cmp_gt_u32 vcc, 16, v7\nv_cndmask_b32 v8, 0, 4, vcc')
    k('v_add_u32 v7, -32, v6\nv_cmp_gt_u32 vcc, 4, v7\nv_cndmask_b32 v9, 0, -16, vcc')
    k('v_add3_u32 v4, v4, v8, v9\nv_mul_u32_u24 v4, 1280, v4\nv_lshl_add_u32 v4, v3, 4, v4')
    k('s_lshl_b32 s4, s23, 7')
    for j in range(4):
        k.mem('buffer_load_dwordx4', V(32+4*j, 4), 'v4', 's[24:27]', 's4', 32*j, tag='w')
    k('v_and_b32 v5, 1, v2\nv_cmp_eq_u32 vcc, 1, v5\nv_mov_b32 v6, 0x3f80\nv_mov_b32 v7, 0x3f800000\nv_cndmask_b32 v6, v6, v7, vcc')
    k('v_lshrrev_b32 v5, 1, v2\nv_lshlrev_b32 v7, 2, v3\nv_sub_u32 v5, v5, v7')
    for s in range(2):
        for r in range(4):
            k(f'v_cmp_eq_u32 vcc, {8*s+r}, v5\nv_cndmask_b32 v{16+4*s+r}, 0, v6, vcc')
    k('v_lshrrev_b32 v8, 4, v2\nv_mul_u32_u24 v8, 20480, v8\nv_lshl_add_u32 v8, v3, 8, v8\nv_and_b32 v9, 15, v2\nv_lshl_add_u32 v8, v9, 4, v8')
    k(f's_mul_i32 s5, s23, 81920\ns_lshl_b32 s6, s22, 10\ns_add_u32 s5, s5, s6\ns_add_u32 s5, s5, {WO}')
    k.vmwait('w')
    for cb in range(2):
        c = V(64+16*cb, 16)
        k(f'v_mfma_f32_32x32x16_bf16 {c}, {V(32+8*cb,4)}, v[16:19], 0')
        k(f'v_mfma_f32_32x32x16_bf16 {c}, {V(36+8*cb,4)}, v[20:23], {c}')
    for cb in range(2):
        for r in range(8):
            k(f'v_cvt_pk_bf16_f32 v{96+8*cb+r}, v{64+16*cb+2*r}, v{64+16*cb+2*r+1}')
        for s in range(2):
            k.mem('buffer_store_dwordx4', V(96+8*cb+4*s, 4), 'v8', 's[8:11]', 's5', cb*40960 + 512*s, 'sc1')
    k('s_endpgm')
    k('k0_notwo:')
    k.inval()
    k('v_mov_b32 v4, 0\nv_mov_b32 v5, 0\nv_mov_b32 v6, 0\nv_mov_b32 v7, 0\nv_lshlrev_b32 v8, 4, v0')
    for j in range(ZERO_BYTES // 4096):
        k.mem('buffer_store_dwordx4', 'v[4:7]', 'v8', 's[8:11]', None, ZERO_LO + 4096*j, 'sc1')
    k('k0_end:\ns_endpgm')
    return k
```

```python
WP   = 0x0000000; WP_STRIDE = 167936
WO   = 0x0300000
XN   = [0x0400000, 0x0700000]
XT   = [0x0A00000, 0x0D00000]
OB   = [0x1000000, 0x1300000]
UB   = [0x1600000, 0x1800000]
KV   = [0x1A00000, 0x1B00000]; KV_STRIDE = 3584
ZB   = 0x1C00000
STA  = [ZB, ZB + 32768]
STB  = [ZB + 16384, ZB + 49152]
FLG  = ZB + 65536
ZERO_LO = ZB + 16384; ZERO_BYTES = 52 * 1024
WS_BYTES = 0x10000000
```

```python
import sys
sys.path.insert(0, 'work')
from asmlib import *
from layout import *
import k0, a1, a2b

def build(path, extra_empty=0):
    out = []
    launches = []
    kds = []
    def entry(name, nv=512, acc=256):
        kds.append(KD.format(name=name, nv=nv, acc=acc))
        return f'.globl {name}\n.p2align 8\n.type {name},@function\n{name}:'
    K0 = k0.gen_k0()
    out.append(entry('k0_kernel', 256, 256)); out += fix_hazards(K0.L)
    stages = [('a1', a1.gen_a1(), a1.a1_stub, 256, 163840), ('a2', a2b.gen_a2(), a2b.a2_stub, 256, 61440)]
    b1 = a2b.gen_b1(); b2 = a2b.gen_b2()
    stages += [('b1', b1, a2b.b1_stub, 240, b1.lds), ('b2', b2, a2b.b2_stub, 256, b2.lds)]
    for nm, body, stub, nwg, lds in stages:
        s1 = K('x'); stub(s1, 1)
        out.append(entry(f'{nm}l1_kernel')); out += s1.L; out.append(f's_branch {nm}_body')
        s0 = K('x'); stub(s0, 0)
        out.append(entry(f'{nm}l0_kernel')); out += s0.L; out.append(f'{nm}_body:')
        out += fix_hazards(body.L)
    launches.append(('k0_kernel', k0.K0_WGS, 12288))
    for l in range(2):
        for nm, body, stub, nwg, lds in stages:
            launches.append((f'{nm}l{l}_kernel', nwg, lds))
    if extra_empty:
        out.append(entry('e_kernel', 32, 32)); out.append('s_endpgm')
        launches += [('e_kernel', 256, 0)] * extra_empty
    hdr = ''.join(f'; @launch kernel={n} grid=({g},1,1) block=(256,1,1) lds={l}\n' for n, g, l in launches)
    txt = hdr + '.amdgcn_target "amdgcn-amd-amdhsa--gfx950"\n.text\n' + '\n'.join(out) + '\n.section .rodata,"a"\n' + '\n'.join(kds) + '\n'
    open(path, 'w').write(txt)

if __name__ == '__main__':
    p = sys.argv[1] if len(sys.argv) > 1 else 'interleave_layers__linear_kernel_hedgehog__mixer_token_mlp__prompt.s'
    build(p, int(sys.argv[2]) if len(sys.argv) > 2 else 0)
```

```python
from asmlib import *
from layout import *
from k0 import prologue

LOG2E = 1.4426950408889634
def fhex(x):
    import struct
    return hex(struct.unpack('<I', struct.pack('<f', x))[0])

def softmax2(k, P, T, E, OUT, tmp, fill=()):
    L = []
    a, b = E, E + 8
    for j in range(6):
        L += [f'v_max3_f32 v{a+j}, v{P+3*j}, v{P+3*j+1}, v{P+3*j+2}', f'v_min3_f32 v{b+j}, v{P+3*j}, v{P+3*j+1}, v{P+3*j+2}']
    L += [f'v_max3_f32 v{a}, v{a}, v{P+18}, v{P+19}', f'v_min3_f32 v{b}, v{b}, v{P+18}, v{P+19}']
    L += [f'v_max3_f32 v{a+1}, v{a+1}, v{a+2}, v{a+3}', f'v_min3_f32 v{b+1}, v{b+1}, v{b+2}, v{b+3}']
    L += [f'v_max3_f32 v{a}, v{a}, v{a+4}, v{a+5}', f'v_min3_f32 v{b}, v{b}, v{b+4}, v{b+5}']
    L += [f'v_max_f32 v{a}, v{a}, v{a+1}', f'v_min_f32 v{b}, v{b}, v{b+1}']
    c1, c2 = tmp + 2, tmp + 4
    L += [f'v_mul_f32 v{c1}, v{a}, -v{T}', f'v_mul_f32 v{c2}, v{b}, v{T}']
    fm = []
    for j in range(0, 20, 2):
        fm.append(f'v_pk_fma_f32 {V(E+j,2)}, {V(P+j,2)}, {V(T,2)}, {V(c1,2)} op_sel_hi:[1,0,0]')
        fm.append(f'v_pk_fma_f32 {V(E+20+j,2)}, {V(P+j,2)}, {V(T,2)}, {V(c2,2)} op_sel_hi:[1,0,0] neg_lo:[1,0,0] neg_hi:[1,0,0]')
    ex = []
    for j in range(0, 20, 2):
        ex.append([f'v_exp_f32 v{E+j}, v{E+j}', f'v_exp_f32 v{E+j+1}, v{E+j+1}'])
        ex.append([f'v_exp_f32 v{E+20+j}, v{E+20+j}', f'v_exp_f32 v{E+21+j}, v{E+21+j}'])
    L += fm[:4]
    for j in range(20):
        L += ex[j]
        if j + 4 < 20: L.append(fm[j+4])
    t1, t2 = OUT, OUT + 10
    for j in range(5):
        L += [f'v_pk_add_f32 {V(t1+2*j,2)}, {V(E+4*j,2)}, {V(E+4*j+2,2)}', f'v_pk_add_f32 {V(t2+2*j,2)}, {V(E+20+4*j,2)}, {V(E+22+4*j,2)}']
    for (d, x, y) in ((0, 0, 2), (4, 4, 6), (0, 0, 8), (0, 0, 4)):
        L += [f'v_pk_add_f32 {V(t1+d,2)}, {V(t1+x,2)}, {V(t1+y,2)}', f'v_pk_add_f32 {V(t2+d,2)}, {V(t2+x,2)}, {V(t2+y,2)}']
    r1, r2 = tmp + 4, tmp + 6
    L += [f'v_add_f32 v{r1}, v{t1}, v{t1+1}', f'v_add_f32 v{r2}, v{t2}, v{t2+1}', f'v_rcp_f32 v{r1}, v{r1}', f'v_rcp_f32 v{r2}, v{r2}']
    mu = []
    for j in range(0, 20, 2):
        mu.append(f'v_pk_mul_f32 {V(E+j,2)}, {V(E+j,2)}, {V(r1,2)} op_sel_hi:[1,0]')
    for j in range(0, 20, 2):
        mu.append(f'v_pk_mul_f32 {V(E+20+j,2)}, {V(E+20+j,2)}, {V(r2,2)} op_sel_hi:[1,0]')
    L += mu[:4]
    for j in range(20):
        L.append(f'v_cvt_pk_bf16_f32 v{OUT+j}, v{E+2*j}, v{E+2*j+1}')
        if j + 4 < 20: L.append(mu[j+4])
    k.weave(L, list(fill))

def a1_stub(k, layer):
    k(f's_mov_b32 s60, {XN[layer]}\ns_mov_b32 s61, {STA[layer]}\ns_mov_b32 s62, {KV[layer]}\ns_mov_b32 s63, {FLG + 2048*layer}\ns_mov_b32 s64, {OB[layer]}')

def gen_a1(PD=3, FS=24):
    k = K('a1')
    prologue(k, 256, [(8, 88, WS_BYTES)])
    WS = 's[8:11]'
    k('s_and_b32 s3, s2, 1\ns_lshl_b32 s3, s3, 3\ns_bfe_u32 s4, s2, 0x30003\ns_add_u32 s21, s3, s4')
    k('s_bfe_u32 s3, s2, 0x20001\ns_lshl_b32 s3, s3, 2\ns_lshr_b32 s4, s2, 6\ns_add_u32 s22, s3, s4')
    k('s_lshl_b32 s23, s21, 2\ns_add_u32 s23, s23, s20')
    k(f's_mul_i32 s29, s22, {WP_STRIDE}\ns_mul_i32 s31, s20, 3072\ns_add_u32 s30, s29, s31')
    k('s_mul_i32 s32, s23, 40960\ns_add_u32 s32, s32, s60')
    k('v_lshlrev_b32 v2, 4, v1\nv_and_b32 v6, 31, v1\nv_lshrrev_b32 v7, 5, v1')
    k('s_lshl_b32 s33, s23, 8\ns_add_u32 s33, s33, s61\nv_lshlrev_b32 v14, 3, v6')
    def ld(txt, tag):
        def f():
            k(txt); k.issue(tag)
        return f
    def chunk(c):
        L = [f's_add_u32 m0, s31, {12288*c}\ns_add_u32 s34, s30, {12288*c}\ns_add_u32 s35, s32, {4096*c}']
        out = []
        for j in range(3):
            out.append(ld((L[0] + '\n' if j == 0 else '') + f'buffer_load_dwordx4 v2, {WS}, s34 offen offset:{1024*j} lds', ('c', c)))
        for j in range(4):
            out.append(ld(f'buffer_load_dwordx4 {A(16*c+4*j,4)}, v2, {WS}, s35 offen offset:{1024*j}', ('c', c)))
        return out
    def ph2dma(g):
        n = 4 if g < 2 else 2
        pre = f's_add_u32 m0, s36, {122880+4096*g}\ns_add_u32 s34, s37, {122880+4096*g}\n'
        return [ld((pre if j == 0 else '') + f'buffer_load_dwordx4 v2, {WS}, s34 offen offset:{1024*j} lds', 'p2') for j in range(n)]
    for f in chunk(0): f()
    k.mem('buffer_load_dwordx2', 'v[8:9]', 'v14', WS, 's33', 0, tag='st')
    for c in range(1, PD):
        for f in chunk(c): f()
    k('s_mul_i32 s36, s20, 10240\ns_add_u32 s37, s29, s36\ns_add_u32 s46, s29, 163840')
    k('v_add_u32 v4, 61440, v2\nv_add_u32 v5, 122880, v2')
    ACC, BUF = 32, 96
    def rd(f):
        off = f * 1024; r = BUF + 4*(f % 24)
        return f'ds_read_b128 {V(r,4)}, v2 offset:{off}' if off < 61440 else f'ds_read_b128 {V(r,4)}, v4 offset:{off-61440}'
    def mf(f):
        s, T = divmod(f, 3)
        cc = V(ACC+16*T, 16)
        return f'v_mfma_f32_32x32x16_bf16 {cc}, {V(BUF+4*(f%24),4)}, {A(4*s,4)}, {cc if s else 0}'
    stats = []
    stats += f'v_mul_f32 v8, {fhex(1/640)}, v8\nv_mul_f32 v9, {fhex(1/640)}, v9\nv_fma_f32 v9, -v8, v8, v9\nv_max_f32 v9, 0, v9\nv_add_f32 v9, {fhex(1e-5)}, v9\nv_rsq_f32 v10, v9'.split('\n')
    stats += 'v_sub_f32 v192, 0, v8\nv_cvt_pk_bf16_f32 v193, v192, v192\nv_lshlrev_b32 v194, 16, v193\nv_sub_f32 v194, v192, v194\nv_cvt_pk_bf16_f32 v194, v194, v194'.split('\n')
    stats += 'v_mov_b32 v195, 0xffff\nv_bfi_b32 v196, v195, v194, v193\nv_bfi_b32 v197, v195, v193, v194\nv_and_b32 v198, v195, v194\nv_cmp_eq_u32 vcc, 1, v7'.split('\n')
    stats += 'v_cndmask_b32 v12, v193, v196, vcc\nv_cndmask_b32 v13, v196, v197, vcc\nv_cndmask_b32 v14, v197, v193, vcc\nv_cndmask_b32 v15, v193, v198, vcc'.split('\n')
    stats += [f'v_mul_f32 v8, {fhex(LOG2E)}, v10']
    extra = [ld(f'buffer_load_dwordx4 {V(16+4*T,4)}, v2, {WS}, s46 offen offset:{1024*T}', 'ex') for T in range(4)]
    late = extra + ph2dma(0) + ph2dma(1) + ph2dma(2)
    nl = 10 - PD
    k.stamp(); k.vmwait(('c', 0)); k('s_barrier'); k.stamp()
    for f in range(9): k(rd(f))
    for c in range(10):
        if c + PD < 10: loads = chunk(c + PD)
        else:
            per = (len(late) + PD - 1) // PD
            loads = late[(c-nl)*per:(c-nl+1)*per]
        main = []
        for j in range(12):
            f = 12*c + j
            pre = ''
            if j % 3 == 0: pre = f's_waitcnt lgkmcnt({min(6, 117 - f)})\n'
            nxt = ('\n' + rd(f + 9)) if f + 9 < 120 else ''
            if j == 3 and c < 9:
                main.append(lambda c=c, t=pre + mf(f) + nxt: (k.vmwait(('c', c+1)), k('s_barrier'), k(t)))
            else: main.append(pre + mf(f) + nxt)
        k.weave(main, loads, stats if c == 1 else [])
    k.stamp(); k.vmwait('ex')
    for T in range(3):
        cc = V(ACC+16*T, 16)
        k(f'v_mfma_f32_32x32x16_bf16 {cc}, {V(16+4*T,4)}, v[12:15], {cc}')
    k('s_lshl_b32 s3, s20, 5\nv_lshl_add_u32 v200, v7, 7, v6\nv_add_u32 v200, s3, v200\nv_mul_u32_u24 v200, 160, v200')
    k('s_lshr_b32 s24, s20, 1\ns_and_b32 s25, s20, 1')
    k('v_lshrrev_b32 v201, 2, v1\nv_mul_u32_u24 v201, 160, v201\nv_and_b32 v202, 3, v1\nv_lshl_add_u32 v201, v202, 3, v201')
    k('s_mul_i32 s3, s24, 20480\ns_lshl_b32 s4, s25, 5\ns_add_u32 s4, s4, 64\nv_add_u32 v201, s3, v201\nv_add_u32 v202, s4, v201')
    P = 96; E = 128
    softmax2(k, ACC, 8, E, P, 192)
    for j in range(0, 20, 2):
        k(f'v_pk_mul_f32 {V(ACC+20+j,2)}, {V(ACC+20+j,2)}, v[10:11] op_sel_hi:[1,0]')
    for j in range(10):
        k(f'v_cvt_pk_bf16_f32 v{P+20+j}, v{ACC+20+2*j}, v{ACC+21+2*j}')
    k(f'v_mov_b32 v{P+30}, 0x3f80\nv_mov_b32 v{P+31}, 0')
    k.stamp(); k.vmwait('p2'); k('s_barrier')
    for j in range(8):
        k(f'ds_write_b128 v200, {V(P+4*j,4)} offset:{16*j}')
    k('v_and_b32 v203, 15, v1\ns_lshl_b32 s3, s25, 4\ns_sub_u32 s3, s3, 8\nv_add_u32 v203, s3, v203\nv_cmp_gt_u32 s[40:41], 21, v203')
    k('v_mul_u32_u24 v203, 80, v203\nv_lshrrev_b32 v204, 4, v1\nv_lshl_add_u32 v203, v204, 3, v203\ns_mul_i32 s3, s24, 1680\nv_add_u32 v203, s3, v203')
    k(f's_lshl_b32 s26, s22, 4\ns_add_u32 s27, s26, s21\ns_mul_i32 s27, s27, {KV_STRIDE}\ns_add_u32 s27, s27, s62')
    k(f's_mul_i32 s26, s26, {KV_STRIDE}\ns_add_u32 s26, s26, s62')
    k('s_waitcnt lgkmcnt(0)\ns_barrier')
    TR = 128; KA = 192 + 16
    for q in range(4):
        for t in range(4):
            for hf in range(2):
                r = TR + 16*q + 4*t + 2*hf
                if t < 3: k(f'ds_read_b64_tr_b16 {V(r,2)}, v201 offset:{q*5120+hf*2560+t*32}')
                else: k(f'ds_read_b64_tr_b16 {V(r,2)}, v202 offset:{q*5120+hf*2560}')
        if q >= 1:
            k('s_waitcnt lgkmcnt(8)')
            for t in range(3):
                cc = V(KA+4*t, 4); r = TR + 16*(q-1)
                k(f'v_mfma_f32_16x16x32_bf16 {cc}, {V(r+4*t,4)}, {V(r+12,4)}, {cc if q>1 else 0}')
    k('s_waitcnt lgkmcnt(0)')
    for t in range(3):
        cc = V(KA+4*t, 4); r = TR + 48
        k(f'v_mfma_f32_16x16x32_bf16 {cc}, {V(r+4*t,4)}, {V(r+12,4)}, {cc}')
    for t in range(3):
        k(f'v_cvt_pk_bf16_f32 v{220+2*t}, v{KA+4*t}, v{KA+4*t+1}\nv_cvt_pk_bf16_f32 v{221+2*t}, v{KA+4*t+2}, v{KA+4*t+3}')
    k('s_mov_b64 exec, s[40:41]')
    k(f'buffer_store_dwordx2 v[220:221], v203, {WS}, s27 offen sc1\nbuffer_store_dwordx2 v[222:223], v203, {WS}, s27 offen offset:32 sc1')
    k('s_mov_b32 exec_hi, 0')
    k(f'buffer_store_dwordx2 v[224:225], v203, {WS}, s27 offen offset:64 sc1')
    k('s_mov_b64 exec, -1')
    k('s_lshl_b32 s28, s22, 7\ns_add_u32 s28, s28, s63\ns_lshl_b32 s3, s21, 2\ns_add_u32 s38, s28, s3')
    k('v_mov_b32 v226, 1\nv_mov_b32 v227, 0')
    k.stamp()
    NS = 14
    def rd2(s): k(f'ds_read_b128 {V(BUF+4*(s%NS),4)}, v5 offset:{1024*s}')
    for s in range(12): rd2(s)
    cc = V(ACC+48, 16)
    k(f'v_mfma_f32_32x32x16_bf16 {cc}, v[28:31], v[12:15], 0')
    for s in range(40):
        if s == FS:
            k('s_waitcnt vmcnt(0)\ns_barrier'); k.stamp()
            k('s_cmp_lg_u32 s20, 0\ns_cbranch_scc1 a1_noflag\ns_mov_b64 exec, 1')
            k(f'buffer_store_dword v226, v227, {WS}, s38 offen sc1')
            k('s_mov_b64 exec, -1\na1_noflag:')
        k(f's_waitcnt lgkmcnt({min(11, 39-s)})')
        k(f'v_mfma_f32_32x32x16_bf16 {cc}, {V(BUF+4*(s%NS),4)}, {A(4*s,4)}, {cc}')
        if s + 12 < 40: rd2(s+12)
    k.stamp()
    k('v_lshrrev_b32 v200, 3, v6\nv_and_b32 v201, 3, v6\nv_lshl_add_u32 v200, v200, 2, v201\nv_bfe_u32 v201, v6, 2, 1')
    k('v_cmp_eq_u32 vcc, v201, v7\nv_cmp_gt_u32 s[42:43], 5, v200')
    k('v_mul_u32_u24 v200, 80, v200\nv_mul_u32_u24 v201, 1680, v201\nv_add_u32 v200, v200, v201\nv_add_u32 v201, 1280, v200\nv_mov_b32 v202, 3360')
    k('s_and_b64 s[42:43], s[42:43], vcc\nv_cndmask_b32 v200, v202, v200, vcc\nv_cndmask_b32 v201, v202, v201, s[42:43]')
    k('v_lshlrev_b32 v203, 4, v0\nv_lshlrev_b32 v204, 2, v1')
    softmax2(k, ACC+40, 8, E, P, 192)
    k.stamp()
    k('s_cmp_lg_u32 s20, 0\ns_cbranch_scc1 a1_polled\ns_mov_b64 exec, 0xffff\ns_mov_b32 s5, 0x40000')
    k('a1_poll:')
    k(f'buffer_load_dword v205, v204, {WS}, s28 offen sc1\ns_sub_u32 s5, s5, 1\ns_cbranch_scc1 a1_pollout\ns_waitcnt vmcnt(0)\nv_cmp_ne_u32 vcc, 1, v205\ns_nop 1\ns_cmp_lg_u64 vcc, 0\ns_cbranch_scc1 a1_poll')
    k('a1_pollout:\ns_waitcnt vmcnt(0)\ns_mov_b64 exec, -1\na1_polled:\ns_barrier')
    k.stamp()
    k('v_cmp_gt_u32 vcc, 210, v0\ns_nop 1\ns_mov_b64 s[44:45], vcc\ns_mov_b64 exec, vcc')
    k.inval()
    for j in range(16):
        k.mem('buffer_load_dwordx4', V(128+4*j, 4), 'v203', WS, 's26', KV_STRIDE*j, 'sc1', tag=('kv', j))
    k('s_mov_b64 exec, -1')
    k('s_mov_b32 s3, 0x3f80\ns_mov_b32 s4, 0x3f800000')
    for r in range(8): k(f'v_mov_b32 v{208+r}, 0')
    for j in range(16):
        if j % 2 == 0: k.vmwait(('kv', j+1))
        for r in range(4):
            k(f'v_dot2c_f32_bf16 v{208+2*r}, s3, v{128+4*j+r}\nv_dot2c_f32_bf16 v{209+2*r}, s4, v{128+4*j+r}')
    for r in range(4):
        k(f'v_cvt_pk_bf16_f32 v{216+r}, v{208+2*r}, v{209+2*r}')
    for r in range(4):
        k(f'v_cndmask_b32 v{216+r}, 0, v{216+r}, s[44:45]')
    k('ds_write_b128 v203, v[216:219]'); k.stamp()
    k('v_lshrrev_b32 v205, 4, v6\nv_mul_u32_u24 v205, 20480, v205\nv_and_b32 v206, 15, v6\nv_lshl_add_u32 v205, v206, 4, v205')
    k('v_lshl_add_u32 v206, v7, 3, v205\nv_lshl_add_u32 v205, v7, 9, v205')
    k('s_mul_i32 s3, s23, 40960\ns_mul_i32 s4, s22, 1280\ns_add_u32 s3, s3, s4\ns_add_u32 s39, s3, s64')
    k('s_waitcnt lgkmcnt(0)\ns_barrier')
    for s in range(5):
        k(f'ds_read_b128 {V(128+8*s,4)}, v200 offset:{16*s}\nds_read_b128 {V(132+8*s,4)}, v201 offset:{16*s}')
    for s in range(5):
        k(f's_waitcnt lgkmcnt({8-2*s})')
        for T in range(2):
            cc = V(ACC+16*T, 16)
            k(f'v_mfma_f32_32x32x16_bf16 {cc}, {V(128+8*s+4*T,4)}, {V(P+4*s,4)}, {cc if s else 0}')
    k(f'v_add_f32 v192, {fhex(1e-6)}, v{ACC+20}\nv_rcp_f32 v192, v192')
    for j in range(0, 20, 2):
        k(f'v_pk_mul_f32 {V(ACC+j,2)}, {V(ACC+j,2)}, v[192:193] op_sel_hi:[1,0]')
    for j in range(10):
        k(f'v_cvt_pk_bf16_f32 v{128+j}, v{ACC+2*j}, v{ACC+2*j+1}')
    k(f'buffer_store_dwordx4 v[128:131], v205, {WS}, s39 offen sc1\nbuffer_store_dwordx4 v[132:135], v205, {WS}, s39 offen offset:256 sc1')
    k(f'buffer_store_dwordx2 v[136:137], v206, {WS}, s39 offen offset:1024 sc1')
    k.stamp()
    k('a1_end:\ns_endpgm')
    return k
```

```python
import re

TRANS = ('v_exp_f32','v_log_f32','v_rcp_f32','v_rsq_f32','v_sqrt_f32','v_sin_f32','v_cos_f32','v_rcp_iflag_f32')
_reg = re.compile(r'\b([vas])(?:\[(\d+):(\d+)\]|(\d+)\b)')

def regs_of(op):
    out = set()
    for m in _reg.finditer(op):
        k = m.group(1)
        if m.group(2) is not None:
            for i in range(int(m.group(2)), int(m.group(3)) + 1): out.add((k, i))
        else:
            out.add((k, int(m.group(4))))
    if re.search(r'\bvcc\b', op): out |= {('s', 'vcc')}
    if re.search(r'\bexec\b', op): out |= {('s', 'exec')}
    if re.search(r'\bm0\b', op): out |= {('s', 'm0')}
    return out

class Ins:
    def __init__(s, text):
        s.text = text
        t = text.split(';')[0].strip()
        s.label = t.endswith(':')
        s.directive = t.startswith('.') and not s.label
        s.empty = (t == '')
        s.mn = ''; s.dst = set(); s.src = set(); s.srcC = set(); s.ab = set()
        if s.label or s.directive or s.empty: return
        p = t.split(None, 1)
        s.mn = mn = p[0]
        rest = p[1] if len(p) > 1 else ''
        ops = [o.strip() for o in re.split(r',(?![^\[]*\])', rest)]
        s.ops = ops
        s.valu = mn.startswith('v_') and not mn.startswith('v_mfma') and not mn.startswith('v_smfmac')
        s.mfma = mn.startswith('v_mfma')
        s.salu = mn.startswith('s_')
        s.vmem = mn.startswith(('buffer_', 'global_', 'flat_'))
        s.ds = mn.startswith('ds_')
        s.trans = mn.split('_e')[0] in TRANS or mn in TRANS
        s.dot = mn.startswith('v_dot')
        s.dpp = any(k in rest for k in ('row_shr', 'row_shl', 'row_ror', 'quad_perm', 'row_bcast', 'row_mirror', 'row_half_mirror', 'wave_', 'row_newbcast'))
        s.perml = mn.startswith('v_permlane')
        s.rdlane = mn.startswith(('v_readfirstlane', 'v_readlane', 'v_writelane'))
        s.lds_dma = s.vmem and re.search(r'\blds\b', rest) is not None
        s.passes = 0
        if s.mfma:
            s.passes = 8 if '32x32' in mn else 4
            s.dst = regs_of(ops[0]); s.ab = regs_of(ops[1]) | regs_of(ops[2]); s.srcC = regs_of(ops[3].split()[0]) if len(ops) > 3 else set()
            s.src = s.ab | s.srcC
        elif s.valu:
            if mn.startswith('v_cmp'):
                s.dst = regs_of(ops[0]); s.src = set().union(*[regs_of(o) for o in ops[1:]])
                if mn.startswith('v_cmpx'): s.dst |= {('s', 'exec')}
            elif s.perml and 'swap' in mn:
                s.dst = regs_of(ops[0]) | regs_of(ops[1]); s.src = set(s.dst)
            elif '_co_' in mn or mn.startswith('v_div_scale'):
                s.dst = regs_of(ops[0]) | regs_of(ops[1]); s.src = set().union(*[regs_of(o) for o in ops[2:]])
            else:
                s.dst = regs_of(ops[0]); s.src = set().union(*[regs_of(o) for o in ops[1:]]) if len(ops) > 1 else set()
                if mn.startswith(('v_fmac', 'v_mac', 'v_dot2c', 'v_writelane')) or s.dpp or 'op_sel' in rest or 'sdwa' in mn: s.src |= s.dst
                if mn.startswith('v_cndmask') and len(ops) == 3: s.src |= {('s', 'vcc')}
        elif s.vmem:
            allr = [regs_of(o) for o in ops]
            if 'store' in mn or ('atomic' in mn):
                s.src = set().union(*allr); s.store_data = allr[0] if mn.startswith('buffer_') else (allr[1] if len(allr) > 1 else set())
                s.wide = 'x3' in mn or 'x4' in mn
            elif s.lds_dma:
                s.src = set().union(*allr) | {('s', 'm0')}
            else:
                s.dst = allr[0]; s.src = set().union(*allr[1:])
        elif s.ds:
            allr = [regs_of(o) for o in ops]
            if mn.startswith(('ds_read', 'ds_bpermute', 'ds_permute', 'ds_swizzle')):
                s.dst = allr[0]; s.src = set().union(*allr[1:])
            else:
                s.src = set().union(*allr)
        elif s.salu:
            if mn.startswith(('s_cmp', 's_waitcnt', 's_nop', 's_barrier', 's_branch', 's_cbranch', 's_endpgm', 's_sleep', 's_setprio', 's_bitcmp')):
                s.src = set().union(*[regs_of(o) for o in ops]) if ops else set()
            else:
                s.dst = regs_of(ops[0]); s.src = set().union(*[regs_of(o) for o in ops[1:]]) if len(ops) > 1 else set()
                if 'saveexec' in mn: s.dst |= {('s', 'exec')}
    def states(s):
        if s.label or s.directive or s.empty: return 0
        if s.mn == 's_nop': return int(s.ops[0]) + 1
        return 1

def isv(r): return r[0] in 'va'
def need(p, c):
    n = 0
    if p.mfma:
        d = p.dst
        if c.mfma:
            if d & c.ab: n = max(n, 12 if p.passes == 8 else 8)
            if d & c.srcC and not (c.srcC == d and c.passes == p.passes): n = max(n, 10 if p.passes == 8 else 6)
            if d & c.dst and not (d & c.srcC): n = max(n, 12 if p.passes == 8 else 8)
        elif (c.valu or c.vmem or c.ds) and (d & (c.src | c.dst)): n = max(n, 12 if p.passes == 8 else 8)
        if c.valu and (p.srcC & c.dst): n = max(n, 7 if p.passes == 8 else 3)
    if p.valu:
        vd = {r for r in p.dst if isv(r)}; sd = {r for r in p.dst if r[0] == 's'}
        if c.mfma and (vd & c.src): n = max(n, 3 if p.dot else 2)
        if c.mfma and ('s', 'exec') in sd: n = max(n, 4)
        if c.valu:
            if p.trans and not c.trans and (vd & c.src): n = max(n, 1)
            if p.trans and c.trans and (vd & c.src): n = max(n, 1)
            if c.dpp and (vd & c.src): n = max(n, 2)
            if c.dpp and ('s', 'exec') in sd: n = max(n, 5)
            if c.perml and (vd & c.src): n = max(n, 2)
            if c.rdlane and (vd & c.src): n = max(n, 1)
            if c.rdlane and (sd & c.src): n = max(n, 4)
            if (c.rdlane or c.perml) and ('s', 'exec') in sd: n = max(n, 4)
            if sd & c.src: n = max(n, 2)
            if p.dot and (vd & (c.src | c.dst)):
                srcC_only = (c.mn == p.mn)
                if srcC_only:
                    a_b = regs_of(c.ops[1]) | regs_of(c.ops[2])
                    if vd & a_b: n = max(n, 3)
                else: n = max(n, 3)
            if ('op_sel' in p.text or 'sdwa' in p.mn) and (vd & (c.src | c.dst)): n = max(n, 1)
        if (c.vmem or c.ds) and p.dot and (vd & c.src): n = max(n, 3)
        if (c.vmem or c.ds) and p.trans and (vd & c.src): n = max(n, 1)
        if c.vmem and (sd & c.src): n = max(n, 5)
        if c.salu and (sd & c.src): n = max(n, 1)
    if p.salu and ('s', 'm0') in p.dst and c.vmem and c.lds_dma: n = max(n, 1)
    if p.salu and ('s', 'exec') in p.dst and c.valu and c.dpp: n = max(n, 1)
    if p.vmem and getattr(p, 'wide', False) and (p.store_data & c.dst): n = max(n, 2)
    if p.ds and p.mn.startswith(('ds_write_b128', 'ds_write_b96')) and c.valu and (p.src & c.dst): n = max(n, 2)
    return n

def fix_hazards(lines):
    out = []; hist = []
    for text in lines:
        c = Ins(text)
        if c.label or c.directive or c.empty:
            out.append(text)
            continue
        dist = 0; req = 0
        for p in reversed(hist):
            if dist >= 12: break
            r = need(p, c) - dist
            if r > req: req = r
            dist += p.states()
        while req > 0:
            k = min(req, 16)
            nop = Ins(f's_nop {k-1}'); out.append(nop.text); hist.append(nop); req -= k
        out.append(text); hist.append(c)
        if len(hist) > 32: hist = hist[-16:]
    return out

PROF = {'on': False, 'off': 0x2000000}
class K:
    def __init__(s, name):
        s.name = name; s.L = []; s.vm = []; s.tmp_s = 99; s.tmpval = None; s.uid = 0; s.nst = 0
    def __call__(s, txt):
        for t in txt.split('\n'):
            t = t.strip()
            if t: s.L.append(t)
    def stamp(s):
        if PROF['on']:
            i = s.nst; s.nst += 1
            assert i < 13
            s(f's_memrealtime s[{70+2*i}:{71+2*i}]')
    def profile_wrap(s):
        if not PROF['on']: return
        L = []
        for i, t in enumerate(s.L):
            if t == f'{s.name}_end:': L.append(f's_branch {s.name}_dump')
            if t == 's_endpgm' and s.L[i-1] != f'{s.name}_end:': t = f's_branch {s.name}_dump'
            L.append(t)
        s.L = L
        s(f'{s.name}_dump:\ns_mov_b64 exec, -1\ns_waitcnt vmcnt(0) lgkmcnt(0)')
        s.stamp()
        s('s_waitcnt lgkmcnt(0)')
        for i in range(s.nst): s(f'v_mov_b32 v{8+i}, s{70+2*i}')
        for i in range(s.nst, 16): s(f'v_mov_b32 v{8+i}, 0')
        s(f's_lshl_b32 s3, s2, 2\ns_add_u32 s3, s3, s20\ns_lshl_b32 s3, s3, 6\ns_lshl_b32 s4, s65, 17\ns_add_u32 s3, s3, s4\ns_add_u32 s3, s3, {PROF["off"]}')
        s('v_mov_b32 v7, 0\ns_mov_b64 exec, 1')
        for j in range(4): s(f'buffer_store_dwordx4 v[{8+4*j}:{11+4*j}], v7, s[8:11], s3 offen offset:{16*j}')
        s('s_endpgm')
    def do(s, it):
        if callable(it): it()
        else: s(it)
    def weave(s, main, *fills):
        nm = len(main); pos = [0]*len(fills)
        for i, it in enumerate(main):
            s.do(it)
            for fi, f in enumerate(fills):
                tgt = (len(f)*(i+1) + nm - 1) // nm
                while pos[fi] < min(tgt, len(f)):
                    s.do(f[pos[fi]]); pos[fi] += 1
    def lab(s, base):
        s.uid += 1; return f'{s.name}_{base}{s.uid}'
    def issue(s, tag=None): s.vm.append(tag)
    def vmwait(s, tag):
        idx = max(i for i, t in enumerate(s.vm) if t == tag)
        n = len(s.vm) - 1 - idx
        s(f's_waitcnt vmcnt({min(n, 63)})')
    def vmwait0(s):
        s('s_waitcnt vmcnt(0)')
    def soff(s, sbase, const):
        hi = const & ~4095; lo = const & 4095
        if hi == 0:
            return (sbase if sbase else '0'), lo
        key = (sbase, hi)
        if s.tmpval != key:
            if sbase: s(f's_add_u32 s{s.tmp_s}, {sbase}, {hi}')
            else: s(f's_mov_b32 s{s.tmp_s}, {hi}')
            s.tmpval = key
        return f's{s.tmp_s}', lo
    def inval(s): s.tmpval = None
    def mem(s, op, data, voff, srd, sbase, const=0, mods='', tag=None):
        so, imm = s.soff(sbase, const)
        o = f' offset:{imm}' if imm else ''
        d = f'{data}, ' if data else ''
        s(f'{op} {d}{voff}, {srd}, {so} offen{o} {mods}'.rstrip())
        s.issue(tag)

def R(k, a, n=1):
    return f'{k}{a}' if n == 1 else f'{k}[{a}:{a+n-1}]'
def V(a, n=1): return R('v', a, n)
def A(a, n=1): return R('a', a, n)
def S(a, n=1): return R('s', a, n)

KD = """.p2align 6
.amdhsa_kernel {name}
  .amdhsa_next_free_vgpr {nv}
  .amdhsa_next_free_sgpr 102
  .amdhsa_accum_offset {acc}
  .amdhsa_group_segment_fixed_size 0
  .amdhsa_kernarg_size 96
  .amdhsa_user_sgpr_count 2
  .amdhsa_user_sgpr_kernarg_segment_ptr 1
  .amdhsa_system_sgpr_workgroup_id_x 1
.end_amdhsa_kernel"""
```

```python
from asmlib import *
from layout2 import *

def srd(k, s, off, nbytes):
    k(f's_mov_b32 s{s+2}, {nbytes}\ns_mov_b32 s{s+3}, 0x20000')

def prologue(k, nwg, ptrs):
    k.stamp()
    k(f's_cmp_ge_u32 s2, {nwg}\ns_cbranch_scc1 {k.name}_end')
    for s, off, nb in ptrs:
        k(f's_load_dwordx2 s[{s}:{s+1}], s[0:1], {off}')
    k('v_lshrrev_b32 v2, 6, v0\nv_and_b32 v1, 63, v0\nv_readfirstlane_b32 s20, v2')
    for s, off, nb in ptrs:
        srd(k, s, off, nb)
    k('s_waitcnt lgkmcnt(0)')

N_WP, N_R, N_X, N_WO, N_Z, N_KV = 80, 96, 128, 50, 4, 32
K0_WGS = N_WP + N_R + N_X + N_WO + N_Z + N_KV
K0_LDS = 12288

def perm_row(k, dst, n, t1, t2):
    k(f'v_and_b32 {dst}, 19, {n}')
    k(f'v_bfe_u32 {t1}, {n}, 2, 1\nv_bfe_u32 {t2}, {n}, 3, 1')
    k(f'v_lshl_or_b32 {dst}, {t1}, 3, {dst}\nv_lshl_or_b32 {dst}, {t2}, 2, {dst}')

def dma_voffs(k, stride, base):
    k(f'v_lshrrev_b32 v28, 3, v1\nv_mul_u32_u24 v{base}, {stride}, v28')
    k(f'v_bfe_u32 v28, v1, 4, 2\nv_lshlrev_b32 v28, 1, v28\nv_and_b32 v29, 7, v1\nv_xor_b32 v28, v28, v29\nv_lshl_add_u32 v{base}, v28, 4, v{base}')
    for n in range(1, 4):
        k(f'v_add_u32 v{base+n}, {n*(8*stride-1024)}, v{base}')

def tr_addrs(k, base, rot, sring):
    k(f'v_lshrrev_b32 v28, 2, v1\nv_lshlrev_b32 v28, 7, v28\nv_and_b32 v29, 3, v1\nv_lshl_add_u32 v28, v29, 3, v28\nv_add_u32 v28, {sring}, v28')
    k('v_bfe_u32 v29, v1, 3, 2')
    for n in range(4):
        k(f'v_xor_b32 v30, {n}, v29')
        k(f'v_lshl_add_u32 v{base+n}, v30, 5, v28')

def gen_k0():
    k = K('k0')
    prologue(k, K0_WGS, [(8, 88, WS_BYTES), (12, 8, 640*1920*2), (16, 16, 32*400*2), (24, 24, 640*640*2), (28, 0, 2048*640*2), (48, 40, 2048*1536*2), (52, 56, 2048*1536*2)])
    k(f's_cmp_ge_u32 s2, {N_WP}\ns_cbranch_scc1 k0_rep')
    k('s_mul_i32 s21, s2, 205\ns_lshr_b32 s21, s21, 10\ns_mul_i32 s22, s21, 5\ns_sub_u32 s22, s2, s22')
    k('s_lshl_b32 s23, s22, 2\ns_add_u32 s23, s23, s20')
    k('v_and_b32 v2, 31, v1\nv_lshrrev_b32 v3, 5, v1')
    perm_row(k, 'v4', 'v2', 'v5', 'v6')
    k('s_lshl_b32 s3, s23, 5\nv_add_u32 v4, s3, v4\nv_mul_u32_u24 v4, 3840, v4')
    k('v_add_u32 v5, 64, v4\nv_lshl_add_u32 v4, v3, 4, v4')
    k('s_mul_i32 s4, s21, 80\ns_add_u32 s5, s4, 1280\ns_add_u32 s6, s4, 2560')
    AF = {'k': 32, 'v': 44, 'q': 56}
    for seg, so in (('k', 's5'), ('v', 's6'), ('q', 's4')):
        for st in range(3):
            r = AF[seg] + 4*st
            if st < 2: k.mem('buffer_load_dwordx4', V(r, 4), 'v4', 's[12:15]', so, 32*st, tag='A'+seg)
            else: k.mem('buffer_load_dwordx4', V(r, 4), 'v5', 's[12:15]', so, 0, tag='A'+seg)
    k('s_mul_i32 s7, s21, 1600\nv_lshlrev_b32 v6, 3, v0')
    k.mem('buffer_load_dwordx2', 'v[8:9]', 'v6', 's[16:19]', 's7', 0, tag='phi')
    k('v_mov_b32 v12, 0\nv_mov_b32 v13, 0\nv_mov_b32 v14, 0\nv_mov_b32 v15, 0\nv_lshlrev_b32 v7, 4, v0')
    k('ds_write_b128 v7, v[12:15]\nds_write_b128 v7, v[12:15] offset:4096')
    k('v_cmp_le_u32 vcc, 100, v0\nv_cndmask_b32 v10, 0, 1, vcc')
    k('v_mul_u32_u24 v11, 100, v10\nv_sub_u32 v11, v0, v11')
    k('v_mul_u32_u24 v16, 205, v11\nv_lshrrev_b32 v16, 10, v16')
    k('v_mul_u32_u24 v17, 5, v16\nv_sub_u32 v17, v11, v17')
    k('v_mul_u32_u24 v17, 384, v17\nv_mul_u32_u24 v18, 1960, v10')
    k('v_add_u32 v17, v17, v18\nv_lshl_add_u32 v17, v16, 1, v17')
    k('v_mul_u32_u24 v18, 98, v0\nv_add_u32 v18, 3840, v18\nv_mov_b32 v19, 0x3f80')
    k('v_lshrrev_b32 v20, 3, v2\nv_bfe_u32 v21, v2, 2, 1\nv_and_b32 v22, 3, v2')
    k('v_mul_u32_u24 v21, 20, v21\nv_add_u32 v21, v21, v22\nv_mul_u32_u24 v21, 96, v21')
    k('v_lshlrev_b32 v23, 4, v3\nv_add_u32 v21, v21, v23\nv_add_u32 v23, 7680, v23')
    combos = [(0, 'k'), (1, 'k'), (1, 'v'), (2, 'v'), (2, 'q'), (3, 'q')]
    G0 = {'k': 0, 'v': 5, 'q': 10}
    for ci, (T, seg) in enumerate(combos):
        r = 24 + ci
        k(f'v_add_u32 v22, {4*T - G0[seg]}, v20')
        k(f'v_cmp_gt_u32 vcc, 5, v22')
        k(f'v_mul_u32_u24 v22, 384, v22\nv_add_u32 v22, v22, v21')
        if seg == 'v': k('v_add_u32 v22, 3840, v22')
        k(f'v_cndmask_b32 v{r}, v23, v22, vcc')
    k('s_waitcnt lgkmcnt(0)\ns_barrier')
    k.vmwait('phi')
    k('v_cmp_gt_u32 vcc, 200, v0\ns_and_saveexec_b64 s[40:41], vcc\ns_cbranch_execz k0_nophi')
    k('ds_write_b16 v17, v8\nds_write_b16_d16_hi v17, v8 offset:96\nds_write_b16 v17, v9 offset:192\nds_write_b16_d16_hi v17, v9 offset:288')
    k('v_cmp_gt_u32 vcc, 40, v0\ns_and_b64 exec, exec, vcc\ns_cbranch_execz k0_nophi')
    k('ds_write_b16 v18, v19')
    k('k0_nophi:\ns_mov_b64 exec, -1')
    k('s_waitcnt lgkmcnt(0)\ns_barrier')
    BF = 68
    for ci in range(6):
        for st in range(3):
            k(f'ds_read_b128 {V(BF + 12*ci + 4*st, 4)}, v{24+ci} offset:{32*st}')
        if ci == 3: k('s_waitcnt lgkmcnt(8)')
    ACC = 144
    k('s_waitcnt lgkmcnt(0)')
    k.vmwait('Aq')
    first = set()
    for st in range(3):
        for ci, (T, seg) in enumerate(combos):
            c = V(ACC + 16*T, 16)
            src = c if T in first else '0'
            first.add(T)
            k(f'v_mfma_f32_32x32x16_bf16 {c}, {V(AF[seg]+4*st,4)}, {V(BF+12*ci+4*st,4)}, {src}')
    k(f's_mul_i32 s32, s21, {WP_STRIDE}\ns_mul_i32 s33, s23, 6144\ns_add_u32 s33, s33, s32')
    k(f's_lshl_b32 s34, s23, 11\ns_add_u32 s34, s34, s32\ns_add_u32 s34, s34, 122880')
    k('v_lshlrev_b32 v4, 4, v1\nv_mov_b32 v5, 0x3f803f80')
    PK = 32
    for T in range(4):
        for r in range(8):
            k(f'v_cvt_pk_bf16_f32 v{PK+8*T+r}, v{ACC+16*T+2*r}, v{ACC+16*T+2*r+1}')
        for s in range(2):
            if T < 3: k.mem('buffer_store_dwordx4', V(PK+8*T+4*s, 4), 'v4', 's[8:11]', 's33', s*3072 + T*1024, 'sc1')
            else: k.mem('buffer_store_dwordx4', V(PK+8*T+4*s, 4), 'v4', 's[8:11]', 's34', s*1024, 'sc1')
    for T in range(4): k(f'v_mov_b32 v{8+T}, 0')
    for r in range(8):
        for T in range(4):
            k(f'v_dot2c_f32_bf16 v{8+T}, v{PK+8*T+r}, v5')
    k('s_lshl_b32 s3, s20, 10\nv_lshl_add_u32 v6, v1, 2, s3')
    for T in range(4): k(f'ds_write_b32 v6, v{8+T} offset:{8192+256*T}')
    k('s_lshl_b32 s3, s20, 8\nv_lshl_add_u32 v6, v2, 2, s3')
    k('s_waitcnt lgkmcnt(0)\ns_barrier')
    for w in range(4):
        k(f'ds_read2_b32 {V(12+2*w,2)}, v6 offset0:0 offset1:32' if False else f'ds_read_b32 v{12+2*w}, v6 offset:{8192+1024*w}\nds_read_b32 v{13+2*w}, v6 offset:{8192+1024*w+128}')
    k('s_waitcnt lgkmcnt(0)')
    k('v_add_f32 v12, v12, v13\nv_add_f32 v14, v14, v15\nv_add_f32 v16, v16, v17\nv_add_f32 v18, v18, v19')
    k('v_add_f32 v12, v12, v14\nv_add_f32 v16, v16, v18\nv_add_f32 v12, v12, v16')
    k('v_cvt_pk_bf16_f32 v13, v12, v12\nv_lshlrev_b32 v14, 16, v13\nv_sub_f32 v14, v12, v14\nv_cvt_pk_bf16_f32 v14, v14, v14\nv_mov_b32 v15, 0')
    k('v_lshlrev_b32 v6, 4, v2')
    k(f's_lshl_b32 s3, s20, 10\ns_add_u32 s35, s32, s3\ns_add_u32 s35, s35, 163840')
    k('s_mul_i32 s36, s22, 3')
    k('s_mov_b64 exec, 0xffffffff')
    for j, r in enumerate((13, 14, 13)):
        k(f's_add_u32 s37, s36, {j}\ns_lshr_b32 s38, s37, 3\ns_lshl_b32 s38, s38, 9\ns_and_b32 s37, s37, 7\ns_lshl_b32 s37, s37, 1\ns_add_u32 s37, s37, s38\ns_add_u32 s37, s37, s35')
        k(f'buffer_store_short v{r}, v6, s[8:11], s37 offen sc1')
    k('s_cmp_lg_u32 s22, 4\ns_cbranch_scc1 k0_end')
    k('buffer_store_short v15, v6, s[8:11], s35 offen offset:526 sc1')
    k('s_endpgm')
    k(f'k0_rep:\ns_cmp_ge_u32 s2, {N_WP+N_R}\ns_cbranch_scc1 k0_notwp')
    k(f's_sub_u32 s21, s2, {N_WP}\ns_lshl_b32 s21, s21, 2\ns_add_u32 s21, s21, s20\ns_lshl_b32 s21, s21, 14\nv_lshlrev_b32 v2, 4, v1')
    k.inval()
    for j in range(16):
        k.mem('buffer_load_dwordx4', V(32+4*j, 4), 'v2', 's[48:51]', 's21', 1024*j)
    for j in range(16):
        k.mem('buffer_load_dwordx4', V(96+4*j, 4), 'v2', 's[52:55]', 's21', 1024*j)
    k('s_endpgm')
    k(f'k0_notwp:\ns_cmp_ge_u32 s2, {N_WP+N_R+N_X}\ns_cbranch_scc1 k0_notx')
    k.inval()
    k(f's_sub_u32 s21, s2, {N_WP+N_R}')
    k('v_and_b32 v2, 15, v1\nv_lshrrev_b32 v3, 4, v1')
    k('v_mul_u32_u24 v4, 1280, v2\nv_lshl_add_u32 v4, v3, 4, v4')
    k('s_mul_i32 s4, s21, 20480\ns_mul_i32 s5, s20, 320\ns_add_u32 s4, s4, s5')
    for q in range(5):
        k.mem('buffer_load_dwordx4', V(32+4*q, 4), 'v4', 's[28:31]', 's4', 64*q, tag=f'x{q}')
    k('v_lshlrev_b32 v5, 9, v3\nv_lshl_add_u32 v5, v2, 4, v5')
    k(f's_lshr_b32 s6, s21, 1\ns_mul_i32 s6, s6, 40960\ns_and_b32 s7, s21, 1\ns_lshl_b32 s7, s7, 8\ns_add_u32 s6, s6, s7')
    k(f's_mul_i32 s7, s20, 10240\ns_add_u32 s6, s6, s7\ns_add_u32 s6, s6, {XN[0]}')
    k('v_mov_b32 v6, 0x3f803f80\nv_mov_b32 v8, 0\nv_mov_b32 v9, 0')
    for q in range(5):
        k.vmwait(f'x{q}')
        k.mem('buffer_store_dwordx4', V(32+4*q, 4), 'v5', 's[8:11]', 's6', 2048*q, 'sc1')
        for r in range(4):
            k(f'v_dot2c_f32_bf16 v8, v{32+4*q+r}, v6\nv_dot2c_f32_bf16 v9, v{32+4*q+r}, v{32+4*q+r}')
    k('v_lshlrev_b32 v7, 3, v0\nds_write_b64 v7, v[8:9]\nv_lshlrev_b32 v7, 3, v2')
    k('s_waitcnt lgkmcnt(0)\ns_barrier')
    k('s_cmp_lg_u32 s20, 0\ns_cbranch_scc1 k0_end')
    for j in range(16):
        k(f'ds_read_b64 {V(32+2*j,2)}, v7 offset:{128*j}')
        if j == 11: k('s_waitcnt lgkmcnt(4)')
    k('s_waitcnt lgkmcnt(0)')
    for st in (8, 4, 2, 1):
        for j in range(st):
            k(f'v_add_f32 v{32+2*j}, v{32+2*j}, v{32+2*(j+st)}\nv_add_f32 v{33+2*j}, v{33+2*j}, v{33+2*(j+st)}')
    k(f's_lshl_b32 s6, s21, 7\ns_add_u32 s6, s6, {STA[0]}\ns_mov_b64 exec, 0xffff')
    k('buffer_store_dwordx2 v[32:33], v7, s[8:11], s6 offen sc1')
    k('s_endpgm')
    k(f'k0_notx:\ns_cmp_ge_u32 s2, {N_WP+N_R+N_X+N_WO}\ns_cbranch_scc1 k0_notwo')
    k.inval()
    k(f's_sub_u32 s21, s2, {N_WP+N_R+N_X}\ns_lshl_b32 s21, s21, 2\ns_add_u32 s21, s21, s20')
    k('s_mul_i32 s22, s21, 205\ns_lshr_b32 s22, s22, 11\ns_mul_i32 s23, s22, 10\ns_sub_u32 s23, s21, s23')
    k('v_and_b32 v2, 31, v1\nv_lshrrev_b32 v3, 5, v1')
    perm_row(k, 'v4', 'v2', 'v5', 'v6')
    k('s_lshl_b32 s3, s22, 5\nv_add_u32 v4, s3, v4')
    k('v_mul_u32_u24 v5, 1639, v4\nv_lshrrev_b32 v5, 16, v5\nv_mul_u32_u24 v5, 40, v5\nv_sub_u32 v6, v4, v5')
    k('v_add_u32 v7, -16, v6\nv_cmp_gt_u32 vcc, 16, v7\nv_cndmask_b32 v8, 0, 4, vcc')
    k('v_add_u32 v7, -32, v6\nv_cmp_gt_u32 vcc, 4, v7\nv_cndmask_b32 v9, 0, -16, vcc')
    k('v_add3_u32 v4, v4, v8, v9\nv_mul_u32_u24 v4, 1280, v4\nv_lshl_add_u32 v4, v3, 4, v4')
    k('s_lshl_b32 s4, s23, 7')
    for j in range(4):
        k.mem('buffer_load_dwordx4', V(32+4*j, 4), 'v4', 's[24:27]', 's4', 32*j, tag='w')
    k('v_and_b32 v5, 1, v2\nv_cmp_eq_u32 vcc, 1, v5\nv_mov_b32 v6, 0x3f80\nv_mov_b32 v7, 0x3f800000\nv_cndmask_b32 v6, v6, v7, vcc')
    k('v_lshrrev_b32 v5, 1, v2\nv_lshlrev_b32 v7, 2, v3\nv_sub_u32 v5, v5, v7')
    for s in range(2):
        for r in range(4):
            k(f'v_cmp_eq_u32 vcc, {8*s+r}, v5\nv_cndmask_b32 v{16+4*s+r}, 0, v6, vcc')
    k('v_lshrrev_b32 v8, 4, v2\nv_mul_u32_u24 v8, 20480, v8\nv_lshl_add_u32 v8, v3, 8, v8\nv_and_b32 v9, 15, v2\nv_lshl_add_u32 v8, v9, 4, v8')
    k(f's_mul_i32 s5, s23, 81920\ns_lshl_b32 s6, s22, 10\ns_add_u32 s5, s5, s6\ns_add_u32 s5, s5, {WO}')
    k.vmwait('w')
    for cb in range(2):
        c = V(64+16*cb, 16)
        k(f'v_mfma_f32_32x32x16_bf16 {c}, {V(32+8*cb,4)}, v[16:19], 0')
        k(f'v_mfma_f32_32x32x16_bf16 {c}, {V(36+8*cb,4)}, v[20:23], {c}')
    for cb in range(2):
        for r in range(8):
            k(f'v_cvt_pk_bf16_f32 v{96+8*cb+r}, v{64+16*cb+2*r}, v{64+16*cb+2*r+1}')
        for s in range(2):
            k.mem('buffer_store_dwordx4', V(96+8*cb+4*s, 4), 'v8', 's[8:11]', 's5', cb*40960 + 512*s, 'sc1')
    k('s_endpgm')
    k('k0_notwo:')
    k.inval()
    k(f'v_lshlrev_b32 v8, 4, v0\ns_cmp_ge_u32 s2, {N_WP+N_R+N_X+N_WO+N_Z}\ns_cbranch_scc1 k0_kv')
    k('v_mov_b32 v4, 0\nv_mov_b32 v5, 0\nv_mov_b32 v6, 0\nv_mov_b32 v7, 0')
    k(f's_sub_u32 s21, s2, {N_WP+N_R+N_X+N_WO}\ns_lshr_b32 s3, s21, 1\ns_mul_i32 s3, s3, {LS}\ns_and_b32 s4, s21, 1\ns_lshl_b32 s4, s4, 16\ns_add_u32 s3, s3, s4\ns_add_u32 s3, s3, {LB+oFLG}')
    for j in range(16):
        k.mem('buffer_store_dwordx4', 'v[4:7]', 'v8', 's[8:11]', 's3', 4096*j, 'sc1')
    k('s_cmp_lg_u32 s21, 3\ns_cbranch_scc1 k0_end')
    for j in range(4):
        k.mem('buffer_store_dwordx4', 'v[4:7]', 'v8', 's[8:11]', None, STA[1] + 4096*j, 'sc1')
    k('s_endpgm\nk0_kv:')
    k.inval()
    k('v_mov_b32 v4, -1\nv_mov_b32 v5, -1\nv_mov_b32 v6, -1\nv_mov_b32 v7, -1')
    k(f's_sub_u32 s21, s2, {N_WP+N_R+N_X+N_WO+N_Z}\ns_lshr_b32 s3, s21, 4\ns_mul_i32 s3, s3, {LS}\ns_and_b32 s4, s21, 15\ns_lshl_b32 s4, s4, 16\ns_add_u32 s3, s3, s4\ns_add_u32 s3, s3, {KV[0]}')
    for j in range(16):
        k.mem('buffer_store_dwordx4', 'v[4:7]', 'v8', 's[8:11]', 's3', 4096*j, 'sc1')
    k('k0_end:\ns_endpgm')
    return k
```

```python
WP   = 0x0000000; WP_STRIDE = 167936
WO   = 0x0300000
LB   = 0x0400000; LS = 0x0D00000
oXN = 0; oXT = 0x300000; oOB = 0x600000; oUB = 0x900000; oKV = 0xAE0000; oSX = 0xBC0000; oSTA = 0xBE0000; oFLG = 0xBE4000
KV_STRIDE = 3584
FST = 128
F_A1 = oFLG; F_A2 = oFLG + 32768; F_B1 = oFLG + 65536; F_B2 = oFLG + 98304
XN = [LB + oXN, LB + LS + oXN]; XT = [LB + oXT, LB + LS + oXT]; OB = [LB + oOB, LB + LS + oOB]
UB = [LB + oUB, LB + LS + oUB]; KV = [LB + oKV, LB + LS + oKV]
STA = [LB + oSTA, LB + LS + oSTA]; SX = [LB + oSX, LB + LS + oSX]
ZERO_RANGES = [(LB + oFLG, 0x20000), (LB + LS + oSTA, 0x24000)]
PROF_OFF = 0x3000000
WS_BYTES = 0x10000000
```

```python
from asmlib import *
from layout2 import *
from k0b import prologue
from a1 import fhex, LOG2E, softmax2
WS = 's[8:11]'
BOUND = 0x40000
RES, SEL, WOL, VP = 244, 236, 240, 235
class M(K):
    def __init__(s, name):
        super().__init__(name); s.pn = 0; s.pend = []
    def st(s):
        if PROF['on']:
            i = len(s.pend); assert i < 13
            s(f's_memrealtime s[{70+2*i}:{71+2*i}]'); s.pend.append(s.pn); s.pn += 1
    def stflush(s):
        if PROF['on']:
            s('s_waitcnt lgkmcnt(0)')
            for i, n in enumerate(s.pend):
                s(f'v_writelane_b32 v{VP}, s{70+2*i}, {n}')
            s.pend = []
    def ld(s, txt, tag):
        def f():
            s(txt); s.issue(tag)
        return f
    def ldm(s, *a, **kw):
        return lambda: s.mem(*a, **kw)
    def poll(s, mask, soff):
        L = s.lab('poll'); O = s.lab('pout')
        s(f's_mov_b64 exec, {mask}\ns_mov_b32 s5, {BOUND}\n{L}:')
        s(f'buffer_load_dword v29, v28, {WS}, {soff} offen sc1\ns_sub_u32 s5, s5, 1\ns_cbranch_scc1 {O}\ns_waitcnt vmcnt(0)')
        s(f'v_cmpx_ne_u32 vcc, 1, v29\ns_cbranch_execnz {L}')
        s(f'{O}:\ns_waitcnt vmcnt(0)\ns_mov_b64 exec, -1\ns_nop 3')
        s.vm = []; s.inval()
    def signal(s, soff, tag):
        L = s.lab('nf')
        s.vmwait(tag); s('s_barrier')
        s(f's_cmp_lg_u32 s20, 0\ns_cbranch_scc1 {L}\ns_mov_b64 exec, 1\nv_mov_b32 v30, 1')
        s(f'buffer_store_dword v30, v255, {WS}, {soff} offen sc1\ns_mov_b64 exec, -1\n{L}:')
        s.inval()
    def run(s, items):
        for g in items: s.do(g)

def take(q, n):
    out = q[:n]; del q[:n]; return out

def wp_loads(k, vo='v2'):
    pre = 's_mul_i32 s31, s20, 3072\ns_add_u32 s30, s29, s31\n'
    def chunk(c, first=''):
        return [k.ld((first + f's_add_u32 m0, s31, {12288*c}\ns_add_u32 s34, s30, {12288*c}\n' if j == 0 else '') +
                     f'buffer_load_dwordx4 {vo}, {WS}, s34 offen offset:{1024*j} lds', 'wp') for j in range(3)]
    early = []
    for c in range(8): early += chunk(c, pre if c == 0 else '')
    late = chunk(8, pre) + chunk(9)
    for g in range(3):
        p2 = ('s_mul_i32 s31, s20, 10240\ns_add_u32 s30, s29, s31\n' if g == 0 else '') + f's_add_u32 m0, s31, {122880+4096*g}\ns_add_u32 s34, s30, {122880+4096*g}\n'
        late += [k.ld((p2 if j == 0 else '') + f'buffer_load_dwordx4 {vo}, {WS}, s34 offen offset:{1024*j} lds', 'wp') for j in range(4 if g < 2 else 2)]
    return early, late

TA, TA15, TB, TB15, VO2, VO1 = 208, 212, 216, 220, 224, 230
def w_dma(k, which, steps):
    srd, sb, vo, st = ('s[60:63]', 's48', VO1, 98304) if which == 1 else ('s[64:67]', 's49', VO2, 131072)
    out = []
    for (s, j) in steps:
        pre = (f's_add_u32 m0, s50, {4096*j}\n' if j < 5 else 's_mov_b32 m0, s51\n') + f's_add_u32 s53, {sb}, {st*s}\n'
        for n in range(4):
            out.append(k.ld((pre if n == 0 else '') + f'buffer_load_dwordx4 v{vo+n}, {srd}, s53 offen offset:{1024*n} lds', f'w{which}'))
    return out
def w_tr(which, steps):
    out = []
    a0, a1, hs = (TA, TA15, 512) if which == 1 else (TB, TB15, 2048)
    for (s, j) in steps:
        for t in range(4):
            for hf in range(2):
                ad, off = (a0 + t, 4096*j + hs*hf) if j < 5 else (a1 + t, hs*hf)
                out.append(f'ds_read_b64_tr_b16 {A(16*s+4*t+2*hf,2)}, v{ad} offset:{off}')
        out[-1] += '\ns_waitcnt lgkmcnt(8)'
    return out
W1A = [(s, s) for s in range(5)]; W1B = [(5+s, s) for s in range(5)]; W1C = [(10+s, s) for s in range(6)]
W2A = [(s, s) for s in range(6)]; W2B = [(6+s, s) for s in range(6)]

def wo_reg(idx): return A(160 + 4*idx, 4) if idx < 24 else V(WOL, 4)
def wo_loads(k):
    pre = f's_mul_i32 s3, s24, 102400\ns_mul_i32 s4, s20, 5120\ns_add_u32 s3, s3, s4\ns_add_u32 s54, s3, {WO}\n'
    for c in range(1, 5): pre += f's_add_u32 s{54+c}, s54, {20480*c}\n'
    out = []
    for s in range(5):
        for c in range(5):
            vo, imm = ('v2', 1024*s) if s < 4 else ('v3', 0)
            out.append(k.ld((pre if s == 0 and c == 0 else '') + f'buffer_load_dwordx4 {wo_reg(5*s+c)}, {vo}, {WS}, s{54+c} offen offset:{imm}', 'wo'))
    return out

def reduce4(lds0, split):
    L = []
    for n in (1, 2, 3, 0):
        t = f's_add_u32 s3, s20, {n}\ns_and_b32 s3, s3, 3\n'
        if split: t += 's_lshr_b32 s4, s3, 1\ns_mul_i32 s4, s4, 92160\n'
        t += f's_mul_i32 s3, s3, 15360\ns_add_u32 s3, s3, {lds0 + (n-1)*5120 if n else lds0}\n'
        if split: t += 's_add_u32 s3, s3, s4\n'
        L.append(t + f'v_add_u32 v{8+(n-1)%4}, s3, v2')
    return L
def reduce4b(k, accreg, nfr, T, OUT, fill, nf=(4, 2, 1)):
    L = []
    for n in range(1, 4):
        for c in range(nfr):
            L.append(f'ds_write_b128 v{8+n-1}, {accreg(n,c)} offset:{1024*c}')
    k.weave(L, take(fill, nf[0]))
    k('s_waitcnt lgkmcnt(0)\ns_barrier'); k.st()
    L = [f'ds_read_b128 {V(T+4*j,4)}, v11 offset:{5120*(j//nfr)+1024*(j%nfr)}' for j in range(3*nfr)]
    k.weave(L, take(fill, nf[1]))
    for n in range(3):
        k(f's_waitcnt lgkmcnt({(2-n)*nfr})')
        for c in range(nfr):
            for r in (0, 2):
                src = OUT + 4*c + r
                if n == 0: src = int(accreg(0, c)[2:].split(':')[0]) + r
                k(f'v_pk_add_f32 {V(OUT+4*c+r,2)}, {V(src,2)}, {V(T+4*(n*nfr+c)+r,2)}')
        for f in take(fill, nf[2]): f()

def gen_a1(k, NI=16, NKV=8, NS1=8):
    k('mn_a1:'); k.st()
    k('s_cmp_eq_u32 s28, 0\ns_cbranch_scc1 mn_a1go')
    k(f's_lshl_b32 s3, s21, 1\ns_lshr_b32 s4, s20, 1\ns_add_u32 s3, s3, s4\ns_lshl_b32 s3, s3, 10\ns_add_u32 s3, s3, s27\ns_add_u32 s6, s3, {F_B2}\nv_lshlrev_b32 v28, 7, v1')
    k.poll('0xff', 's6')
    k('mn_a1go:'); k.st()
    k('s_lshl_b32 s7, s21, 2\ns_add_u32 s7, s7, s20')
    k(f's_mul_i32 s32, s7, 40960\ns_add_u32 s32, s32, s27')
    k(f's_lshl_b32 s33, s7, 8\ns_add_u32 s33, s33, s27\ns_add_u32 s33, s33, {oSTA}\nv_lshlrev_b32 v14, 3, v6')
    k.inval()
    k.mem('buffer_load_dwordx2', 'v[8:9]', 'v14', WS, 's33', 0, 'sc1', tag='st')
    def xl(s):
        pre = f's_add_u32 s35, s32, {4096*(s>>2)}\n' if s % 4 == 0 else ''
        return k.ld(pre + f'buffer_load_dwordx4 {A(4*s,4)}, v2, {WS}, s35 offen offset:{1024*(s&3)} sc1', ('x', s))
    for s in range(NI): xl(s)()
    k('s_add_u32 s59, s29, 163840')
    ACC, BUF = 32, 96
    def rd(f):
        off = f * 1024; r = BUF + 4*(f % 24)
        return f'ds_read_b128 {V(r,4)}, v2 offset:{off}' if off < 61440 else f'ds_read_b128 {V(r,4)}, v228 offset:{off-61440}'
    def mf(f):
        s, T = divmod(f, 3)
        cc = V(ACC+16*T, 16)
        return f'v_mfma_f32_32x32x16_bf16 {cc}, {V(BUF+4*(f%24),4)}, {A(4*s,4)}, {cc if s else 0}'
    stats = []
    stats += f'v_mul_f32 v8, {fhex(1/640)}, v8\nv_mul_f32 v9, {fhex(1/640)}, v9\nv_fma_f32 v9, -v8, v8, v9\nv_max_f32 v9, 0, v9\nv_add_f32 v9, {fhex(1e-5)}, v9\nv_rsq_f32 v10, v9'.split('\n')
    stats += 'v_sub_f32 v192, 0, v8\nv_cvt_pk_bf16_f32 v193, v192, v192\nv_lshlrev_b32 v194, 16, v193\nv_sub_f32 v194, v192, v194\nv_cvt_pk_bf16_f32 v194, v194, v194'.split('\n')
    stats += 'v_mov_b32 v195, 0xffff\nv_bfi_b32 v196, v195, v194, v193\nv_bfi_b32 v197, v195, v193, v194\nv_and_b32 v198, v195, v194\nv_cmp_eq_u32 vcc, 1, v7'.split('\n')
    stats += 'v_cndmask_b32 v12, v193, v196, vcc\nv_cndmask_b32 v13, v196, v197, vcc\nv_cndmask_b32 v14, v197, v193, vcc\nv_cndmask_b32 v15, v193, v198, vcc'.split('\n')
    stats += [f'v_mul_f32 v8, {fhex(LOG2E)}, v10']
    q = [xl(s) for s in range(NI, 40)]
    q += [k.ld(f'buffer_load_dwordx4 {V(16+4*T,4)}, v2, {WS}, s59 offen offset:{1024*T}', 'ex') for T in range(4)]
    q += wo_loads(k)
    k(f's_waitcnt vmcnt({NI+1})\ns_barrier')
    for f in range(9): k(rd(f))
    k.st()
    for s in range(40):
        k.vmwait(('x', s))
        k(f's_waitcnt lgkmcnt({min(6, 117 - 3*s)})')
        if s == 0: k.st()
        for T in range(3):
            f = 3*s + T
            k(mf(f))
            if f + 9 < 120: k(rd(f + 9))
            if T == 0:
                for g in take(q, 1): g()
            if T == 1 and 2 <= s:
                for g in take(stats, 2): k(g)
    k.st(); k.vmwait('ex')
    for T in range(3):
        cc = V(ACC+16*T, 16)
        k(f'v_mfma_f32_32x32x16_bf16 {cc}, {V(16+4*T,4)}, v[12:15], {cc}')
    k('s_lshl_b32 s3, s20, 5\nv_lshl_add_u32 v200, v7, 7, v6\nv_add_u32 v200, s3, v200\nv_mul_u32_u24 v200, 160, v200')
    k('s_lshr_b32 s36, s20, 1\ns_and_b32 s37, s20, 1')
    k('v_lshrrev_b32 v201, 2, v1\nv_mul_u32_u24 v201, 160, v201\nv_and_b32 v202, 3, v1\nv_lshl_add_u32 v201, v202, 3, v201')
    k('s_mul_i32 s3, s36, 20480\ns_lshl_b32 s4, s37, 5\ns_add_u32 s4, s4, 64\nv_add_u32 v201, s3, v201\nv_add_u32 v202, s4, v201')
    P = 96; E = 128
    softmax2(k, ACC, 8, E, P, 192, fill=q); q = []
    for j in range(0, 20, 2):
        k(f'v_pk_mul_f32 {V(ACC+20+j,2)}, {V(ACC+20+j,2)}, v[10:11] op_sel_hi:[1,0]')
    for j in range(10):
        k(f'v_cvt_pk_bf16_f32 v{P+20+j}, v{ACC+20+2*j}, v{ACC+21+2*j}')
    k(f'v_mov_b32 v{P+30}, 0x3f80\nv_mov_b32 v{P+31}, 0')
    k.st(); k('s_barrier')
    w1q = w_dma(k, 1, W1A)
    k.weave([f'ds_write_b128 v200, {V(P+4*j,4)} offset:{16*j}' for j in range(8)], take(w1q, 2))
    k('s_lshl_b32 s3, s37, 4\ns_sub_u32 s3, s3, 8\nv_add_u32 v203, s3, v4\nv_cmp_gt_u32 s[38:39], 21, v203')
    k('v_mul_u32_u24 v203, 80, v203\nv_lshl_add_u32 v203, v5, 3, v203\ns_mul_i32 s3, s36, 1680\nv_add_u32 v203, s3, v203')
    k(f's_lshl_b32 s6, s22, 4\ns_add_u32 s7, s6, s21\ns_mul_i32 s7, s7, {KV_STRIDE}\ns_add_u32 s7, s7, s27\ns_add_u32 s7, s7, {oKV}')
    k(f's_mul_i32 s6, s6, {KV_STRIDE}\ns_add_u32 s6, s6, s27\ns_add_u32 s6, s6, {oKV}')
    k.run(take(w1q, 2))
    k('s_waitcnt lgkmcnt(0)\ns_barrier')
    TR = 128; KA = [192, 196, 204]
    for qq in range(4):
        for t in range(4):
            for hf in range(2):
                r = TR + 16*qq + 4*t + 2*hf
                if t < 3: k(f'ds_read_b64_tr_b16 {V(r,2)}, v201 offset:{qq*5120+hf*2560+t*32}')
                else: k(f'ds_read_b64_tr_b16 {V(r,2)}, v202 offset:{qq*5120+hf*2560}')
        if qq >= 1:
            k('s_waitcnt lgkmcnt(8)')
            for t in range(3):
                cc = V(KA[t], 4); r = TR + 16*(qq-1)
                k(f'v_mfma_f32_16x16x32_bf16 {cc}, {V(r+4*t,4)}, {V(r+12,4)}, {cc if qq>1 else 0}')
        if qq < NKV - 4: k.run(take(w1q, 1))
    k('s_waitcnt lgkmcnt(0)')
    for t in range(3):
        cc = V(KA[t], 4); r = TR + 48
        k(f'v_mfma_f32_16x16x32_bf16 {cc}, {V(r+4*t,4)}, {V(r+12,4)}, {cc}')
    NS = 14
    def rd2(s): return f'ds_read_b128 {V(BUF+4*(s%NS),4)}, v229 offset:{1024*s}'
    for s in range(8): k(rd2(s))
    for t in range(3):
        k(f'v_cvt_pk_bf16_f32 v{KA[t]}, v{KA[t]}, v{KA[t]+1}\nv_cvt_pk_bf16_f32 v{KA[t]+1}, v{KA[t]+2}, v{KA[t]+3}')
    k('s_mov_b64 exec, s[38:39]')
    k(f'buffer_store_dwordx2 v[192:193], v203, {WS}, s7 offen sc1\nbuffer_store_dwordx2 v[196:197], v203, {WS}, s7 offen offset:32 sc1')
    k('s_mov_b32 exec_hi, 0')
    k(f'buffer_store_dwordx2 v[204:205], v203, {WS}, s7 offen offset:64 sc1')
    k('s_mov_b64 exec, -1')
    for _ in range(3): k.issue('kvst')
    k.st()
    for s in range(8, 12): k(rd2(s))
    cc = V(ACC+48, 16)
    k(f'v_mfma_f32_32x32x16_bf16 {cc}, v[28:31], v[12:15], 0')
    prep = []
    prep += 'v_lshrrev_b32 v200, 3, v6\nv_and_b32 v201, 3, v6\nv_lshl_add_u32 v200, v200, 2, v201\nv_bfe_u32 v201, v6, 2, 1'.split('\n')
    prep += 'v_cmp_eq_u32 vcc, v201, v7\nv_cmp_gt_u32 s[38:39], 5, v200'.split('\n')
    prep += 'v_mul_u32_u24 v200, 80, v200\nv_mul_u32_u24 v201, 1680, v201\nv_add_u32 v200, v200, v201\nv_add_u32 v201, 1280, v200\nv_mov_b32 v202, 3360'.split('\n')
    prep += 's_and_b64 s[38:39], s[38:39], vcc\nv_cndmask_b32 v200, v202, v200, vcc\nv_cndmask_b32 v201, v202, v201, s[38:39]'.split('\n')
    prep += ['v_lshlrev_b32 v203, 4, v0', 'v_cmp_gt_u32 vcc, 210, v0', 'v_mov_b32 v202, 0x40000000', 'v_cndmask_b32 v204, v202, v203, vcc']
    prep += 'v_lshrrev_b32 v206, 4, v6\nv_mul_u32_u24 v206, 20480, v206\nv_and_b32 v207, 15, v6\nv_lshl_add_u32 v206, v207, 4, v206'.split('\n')
    prep += 'v_lshl_add_u32 v207, v7, 3, v206\nv_lshl_add_u32 v206, v7, 9, v206'.split('\n')
    prep += [f's_lshl_b32 s3, s21, 2\ns_add_u32 s3, s3, s20\ns_mul_i32 s3, s3, 40960\ns_mul_i32 s4, s22, 1280\ns_add_u32 s3, s3, s4\ns_add_u32 s3, s3, s27\ns_add_u32 s33, s3, {oOB}']
    PR = [16 + 4*j for j in range(14)] + [168, 172]
    def kvl():
        out = []
        for j in range(16):
            off = KV_STRIDE*j
            out.append(k.ld(f's_add_u32 s35, s6, {off}\nbuffer_load_dwordx4 {V(PR[j],4)}, v204, {WS}, s35 offen sc1', ('kv', j)))
        return out
    for s in range(40):
        k(f's_waitcnt lgkmcnt({min(11, 39-s)})')
        k(f'v_mfma_f32_32x32x16_bf16 {cc}, {V(BUF+4*(s%NS),4)}, {A(4*s,4)}, {cc}')
        if s + 12 < 40: k(rd2(s+12))
        if s >= 2:
            for g in take(prep, 1): k(g)
        if s % 3 == 1: k.run(take(w1q, 1))
    assert not prep and not w1q
    k.st()
    softmax2(k, ACC+40, 8, E, P, 192, fill=kvl())
    k.st()
    k(f's_mov_b32 s3, 0x3f80\ns_mov_b32 s4, 0x3f800000\ns_mov_b32 s5, {BOUND}')
    KS = 176
    k('mn_kvsum:')
    for r in range(9): k(f'v_mov_b32 v{KS+r}, 0')
    for j in range(16):
        if j % 2 == 0: k.vmwait(('kv', j+1))
        for r in range(4):
            k(f'v_dot2c_f32_bf16 v{KS+2*r}, s3, v{PR[j]+r}\nv_dot2c_f32_bf16 v{KS+1+2*r}, s4, v{PR[j]+r}')
        k(f'v_max3_u32 v{KS+8}, v{KS+8}, v{PR[j]}, v{PR[j]+2}')
    k(f'v_cmp_eq_u32 vcc, -1, v{KS+8}\ns_cbranch_vccz mn_kvok\ns_sub_u32 s5, s5, 1\ns_cbranch_scc1 mn_kvok')
    sv = list(k.vm)
    k.run(kvl()); k('s_waitcnt vmcnt(0)\ns_branch mn_kvsum\nmn_kvok:')
    k.vm = sv; k.inval()
    for r in range(4):
        k(f'v_cvt_pk_bf16_f32 v{KS+8+r}, v{KS+2*r}, v{KS+1+2*r}')
    k(f'ds_write_b128 v203, {V(KS+8,4)}'); k.st()
    k(f's_lshl_b32 s3, s21, 4\ns_add_u32 s3, s3, s22\ns_lshl_b32 s3, s3, 7\ns_add_u32 s3, s3, s27\ns_add_u32 s6, s3, {F_A1}')
    k('s_waitcnt lgkmcnt(0)\ns_barrier')
    for s in range(5):
        k(f'ds_read_b128 {V(128+8*s,4)}, v200 offset:{16*s}\nds_read_b128 {V(132+8*s,4)}, v201 offset:{16*s}')
    for s in range(5):
        k(f's_waitcnt lgkmcnt({8-2*s})')
        for T in range(2):
            cc = V(ACC+16*T, 16)
            k(f'v_mfma_f32_32x32x16_bf16 {cc}, {V(128+8*s+4*T,4)}, {V(P+4*s,4)}, {cc if s else 0}')
    trq = w_tr(1, W1A)
    k.run(take(trq, 8))
    k(f'v_add_f32 v192, {fhex(1e-6)}, v{ACC+20}\nv_rcp_f32 v192, v192')
    for j in range(0, 20, 2):
        k(f'v_pk_mul_f32 {V(ACC+j,2)}, {V(ACC+j,2)}, v[192:193] op_sel_hi:[1,0]')
    for j in range(10):
        k(f'v_cvt_pk_bf16_f32 v{128+j}, v{ACC+2*j}, v{ACC+2*j+1}')
    k(f'buffer_store_dwordx4 v[128:131], v206, {WS}, s33 offen sc1\nbuffer_store_dwordx4 v[132:135], v206, {WS}, s33 offen offset:256 sc1')
    k(f'buffer_store_dwordx2 v[136:137], v207, {WS}, s33 offen offset:1024 sc1')
    for _ in range(3): k.issue('ost')
    k.st()
    k.run(trq); k('s_waitcnt lgkmcnt(0)')
    w1q = w_dma(k, 1, W1B)
    k.run(take(w1q, NS1))
    k.signal('s6', 'ost'); k.st()
    k.stflush()
    return w1q

def gen_a2(k, w1q, NM=3, NS2=8):
    k.run(w1q)
    k(f's_lshr_b32 s3, s23, 1\ns_lshl_b32 s3, s3, 2\ns_add_u32 s3, s3, s20\ns_lshl_b32 s3, s3, 9\ns_add_u32 s3, s3, s27\ns_add_u32 s6, s3, {F_A1}\nv_lshlrev_b32 v28, 7, v1')
    k('s_mul_i32 s7, s20, 5120\ns_lshl_b32 s34, s23, 2')
    for n in range(4):
        k(f's_add_u32 s3, s20, {n}\ns_and_b32 s3, s3, 3\ns_add_u32 s3, s3, s34\ns_mul_i32 s3, s3, 20480\ns_add_u32 s3, s3, s7\ns_add_u32 s3, s3, s27\ns_add_u32 s{30+n}, s3, {oOB}')
    OF, ACC, OUT, T = 32, 112, 92, 32
    acc = lambda n, c: V(ACC + 20*n + 4*c, 4)
    for c in range(5):
        k(f'v_mfma_f32_16x16x32_bf16 {acc(0,c)}, {V(RES+2*c,4)}, {V(SEL,4)}, 0')
    k.run(reduce4(0, True))
    k('s_lshr_b32 s3, s20, 1\ns_lshl_b32 s35, s23, 1\ns_add_u32 s35, s35, s3\ns_and_b32 s36, s20, 1')
    k(f's_mul_i32 s3, s24, 327680\ns_lshl_b32 s4, s35, 10\ns_add_u32 s3, s3, s4\ns_lshl_b32 s4, s36, 9\ns_add_u32 s3, s3, s4\ns_add_u32 s3, s3, s27\ns_add_u32 s37, s3, {oXT}')
    k(f's_add_u32 s3, s34, s20\ns_lshl_b32 s3, s3, 10\ns_add_u32 s3, s3, s27\ns_add_u32 s38, s3, {oSX}\ns_lshl_b32 s3, s24, 7\ns_add_u32 s39, s38, s3')
    k('v_lshrrev_b32 v12, 2, v1\nv_lshlrev_b32 v12, 3, v12\nv_and_b32 v13, 7, v1\nv_lshlrev_b32 v13, 7, v13\nv_lshl_add_u32 v13, v5, 5, v13\nv_bfe_u32 v14, v1, 3, 1\nv_lshl_add_u32 v13, v14, 4, v13')
    k('v_and_b32 v14, 1, v5\nv_lshlrev_b32 v14, 16, v14\nv_lshl_add_u32 v14, v4, 4, v14\nv_lshrrev_b32 v15, 1, v5\nv_lshl_add_u32 v14, v15, 8, v14')
    k.st(); k.poll('15', 's6'); k.st()
    L = []
    for s in range(5):
        vo, imm = ('v2', 1024*s) if s < 4 else ('v3', 0)
        for n in range(4):
            L.append(k.ld(f'buffer_load_dwordx4 {V(OF+16*s+4*n,4)}, {vo}, {WS}, s{30+n} offen offset:{imm} sc1', ('s', s)))
    k.weave(L, w_tr(1, W1B))
    k(f's_lshl_b32 s3, s23, 3\ns_add_u32 s3, s3, s24\ns_lshl_b32 s3, s3, 7\ns_add_u32 s3, s3, s27\ns_add_u32 s6, s3, {F_A2}')
    k('s_waitcnt lgkmcnt(0)')
    w1q = w_dma(k, 1, W1C)
    for s in range(5):
        k.vmwait(('s', s))
        if s == 0: k.st()
        L = []
        for n in range(4):
            for c in range(5):
                L.append(f'v_mfma_f32_16x16x32_bf16 {acc(n,c)}, {V(OF+16*s+4*n,4)}, {wo_reg(5*s+c)}, {acc(n,c) if (s or n == 0) else 0}')
        k.weave(L, take(w1q, NM))
    k.st()
    reduce4b(k, acc, 5, T, OUT, w1q, (3, 2, 1))
    k.st()
    L = [f'v_pk_add_f32 v[32:33], {V(OUT,2)}, {V(OUT+4,2)}', f'v_pk_add_f32 v[34:35], {V(OUT+2,2)}, {V(OUT+6,2)}',
         f'v_pk_mul_f32 v[36:37], {V(OUT,2)}, {V(OUT,2)}', f'v_pk_mul_f32 v[38:39], {V(OUT+2,2)}, {V(OUT+2,2)}']
    for c in range(1, 5):
        for h in range(2):
            x = V(OUT+4*c+2*h, 2)
            if c >= 2: L.append(f'v_pk_add_f32 {V(32+2*h,2)}, {V(32+2*h,2)}, {x}')
            L.append(f'v_pk_fma_f32 {V(36+2*h,2)}, {x}, {x}, {V(36+2*h,2)}')
    dp = lambda d, x, ctl, bm: f'v_add_f32_dpp v{d}, v{x}, v{x} {ctl} row_mask:0xf bank_mask:{bm}'
    for j, x in enumerate((32, 33, 36, 37)):
        L += [dp(40+j, x, 'row_ror:8', '0x3'), dp(40+j, x+2, 'row_ror:8', '0xc')]
    L += [dp(44, 40, 'row_ror:12', '0x5'), dp(45, 42, 'row_ror:12', '0x5'), dp(44, 41, 'row_ror:4', '0xa'), dp(45, 43, 'row_ror:4', '0xa')]
    for qp in ('[1,0,3,2]', '[2,3,0,1]'):
        L += [dp(44, 44, f'quad_perm:{qp}', '0xf'), dp(45, 45, f'quad_perm:{qp}', '0xf')]
    k.weave(L, w1q)
    k('s_mov_b32 exec_lo, 0x11111111\ns_mov_b32 exec_hi, 0x11111111')
    k(f'buffer_store_dwordx2 v[44:45], v12, {WS}, s39 offen sc1\ns_mov_b64 exec, -1'); k.issue('sx')
    k.st()
    for j in range(10): k(f'v_cvt_pk_bf16_f32 v{RES+j}, v{OUT+2*j}, v{OUT+2*j+1}')
    k.vmwait('w1')
    trq = w_tr(1, W1C)
    k.run(take(trq, 24))
    k(f'buffer_load_dwordx4 v[48:51], v13, {WS}, s38 offen sc1\ns_mov_b32 s5, {BOUND}')
    k.run(trq)
    k.st()
    k('mn_sxl:\ns_waitcnt vmcnt(0)\nv_max3_u32 v52, v48, v49, v50\nv_max_u32 v52, v52, v51\nv_cmp_eq_u32 vcc, -1, v52\ns_cbranch_vccz mn_sxok')
    k(f's_sub_u32 s5, s5, 1\ns_cbranch_scc1 mn_sxok\nbuffer_load_dwordx4 v[48:51], v13, {WS}, s38 offen sc1\ns_branch mn_sxl\nmn_sxok:')
    k.vm = []; k.inval(); k.st()
    k.run([dp(54, 48, 'row_half_mirror', '0x5'), dp(55, 49, 'row_half_mirror', '0x5'), dp(54, 50, 'row_half_mirror', '0xa'), dp(55, 51, 'row_half_mirror', '0xa')])
    for qp in ('[1,0,3,2]', '[2,3,0,1]'):
        k.run([dp(54, 54, f'quad_perm:{qp}', '0xf'), dp(55, 55, f'quad_perm:{qp}', '0xf')])
    c640, eps = fhex(1/640), fhex(1e-5)
    k(f'v_mul_f32 v54, {c640}, v54\nv_mul_f32 v55, {c640}, v55\nv_fma_f32 v55, -v54, v54, v55\nv_max_f32 v55, 0, v55\nv_add_f32 v52, {eps}, v55\nv_rsq_f32 v52, v52')
    k(f'v_mov_b32 v53, {eps}\nv_mul_f32 v55, v55, v52\nv_fma_f32 v53, v55, v52, v53\nv_rsq_f32 v53, v53\nv_mul_f32 v52, v52, v53\nv_mul_f32 v53, -v54, v52')
    for t in range(4):
        k(f'v_mov_b32_dpp v{56+t}, v52 row_newbcast:{4*t} row_mask:0xf bank_mask:0xf')
    for t in range(4):
        k(f'v_mov_b32_dpp v{60+t}, v53 row_newbcast:{4*t} row_mask:0xf bank_mask:0xf')
    HP = 64
    for c in range(5):
        for h in range(2):
            x = V(OUT+4*c+2*h, 2)
            k(f'v_pk_fma_f32 {x}, {x}, {V(56+2*h,2)}, {V(60+2*h,2)}')
    for c0 in (0, 2, 4):
        for j in range(2*c0, min(2*c0+4, 10)): k(f'v_cvt_pk_bf16_f32 v{HP+j}, v{OUT+2*j}, v{OUT+2*j+1}')
        k(f'v_permlane16_swap_b32 v{HP+2*c0}, v{HP+2*c0+2}\nv_permlane16_swap_b32 v{HP+2*c0+1}, v{HP+2*c0+3}')
        if c0 == 4: k('s_mov_b32 exec_lo, 0xffff\ns_mov_b32 exec_hi, 0xffff')
        k.mem('buffer_store_dwordx4', V(HP+2*c0, 4), 'v14', WS, 's37', 65536*c0, 'sc1', tag='xt')
    k('s_mov_b64 exec, -1\ns_waitcnt lgkmcnt(0)')
    k.st()
    w2q = w_dma(k, 2, W2A)
    k.run(take(w2q, NS2))
    k.signal('s6', 'xt'); k.st(); k.stflush()
    return w2q

def gen_b1(k, w2q, NR=28, NI=12, NL=0, NF=(0, 0, 0), NG=0, NS3=8):
    k.run(w2q)
    k('s_cmp_ge_u32 s2, 240\ns_cbranch_scc1 mn_b1skip')
    k('s_lshl_b32 s3, s25, 6\ns_add_u32 s4, s3, 63\ns_mul_i32 s3, s3, 205\ns_lshr_b32 s3, s3, 14\ns_mul_i32 s4, s4, 205\ns_lshr_b32 s4, s4, 14\ns_sub_u32 s4, s4, s3\ns_lshl_b32 s4, s4, 7')
    k('v_and_b32 v29, 1, v1\nv_mul_u32_u24 v29, s4, v29\nv_lshrrev_b32 v28, 1, v1\nv_lshl_add_u32 v28, v28, 10, v29')
    k(f's_lshl_b32 s3, s3, 7\ns_lshl_b32 s4, s20, 13\ns_add_u32 s3, s3, s4\ns_add_u32 s3, s3, s27\ns_add_u32 s6, s3, {F_A2}')
    for n in range(4):
        k(f's_add_u32 s3, s20, {n}\ns_and_b32 s3, s3, 3\ns_lshl_b32 s4, s25, 2\ns_add_u32 s3, s3, s4\ns_lshl_b32 s3, s3, 16\ns_lshl_b32 s4, s20, 14\ns_add_u32 s3, s3, s4\ns_add_u32 s3, s3, s27\ns_add_u32 s{30+n}, s3, {oXT}')
    B1 = 12
    k('v_lshlrev_b32 v20, 3, v5\ns_lshl_b32 s7, s26, 7')
    for t in range(4): k(f'buffer_load_dwordx2 {V(B1+2*t,2)}, v20, s[12:15], s7 offen offset:{32*t}')
    k.run(reduce4(0, True))
    ACC = 32; XR = 96
    k.st(); k.poll('0xffff', 's6'); k.st()
    def xl(q):
        s, n = divmod(q, 4)
        pre = f's_add_u32 s{30+n}, s{30+n}, 4096\n' if (s % 4 == 0 and s) else ''
        return k.ld(pre + f'buffer_load_dwordx4 {V(XR+4*(q%NR),4)}, v2, {WS}, s{30+n} offen offset:{1024*(s&3)} sc1', ('x', q))
    xq = [xl(q) for q in range(64)]
    k.run(take(xq, NI))
    acc = lambda n, t: V(ACC + 16*n + 4*t, 4)
    trq = w_tr(2, W2A)
    w2q = w_dma(k, 2, W2B)
    KC = 2*0.7978845608028654*LOG2E
    misc = [f's_mov_b32 s36, {fhex(-KC*0.044715)}', f'v_mov_b32 v28, {fhex(-KC)}', 's_mov_b32 s37, 0xffff0000']
    for t in range(4):
        for j in range(2):
            misc += [f'v_and_b32 v{20+1 if False else 0}, 0, 0'] if False else []
    misc += [f's_lshl_b32 s3, s25, 2\ns_add_u32 s3, s3, s20\ns_mul_i32 s3, s3, 49152\ns_lshl_b32 s4, s26, 11\ns_add_u32 s3, s3, s4\ns_add_u32 s3, s3, s27\ns_add_u32 s7, s3, {oUB}']
    misc += [f's_mul_i32 s3, s25, 24\ns_add_u32 s3, s3, s26\ns_lshl_b32 s3, s3, 7\ns_add_u32 s3, s3, s27\ns_add_u32 s6, s3, {F_B1}']
    issued = NI; nl = NL
    for q in range(64):
        s, n = divmod(q, 4)
        k.vmwait(('x', q))
        if q in (0, 16, 32, 48): k.st()
        ex = []
        while issued < 64 and issued < q + NR and len(ex) < 2:
            ex += take(xq, 1); issued += 1
        if 1 <= s <= 6: tr = take(trq, 2)
        else: tr = []
        if q == 32: ex.append('s_waitcnt lgkmcnt(0)')
        if issued == 64 and not ex and q > 32 and nl > 0: ex += take(w2q, 1); nl -= 1
        if q >= 50: tr += take(misc, 1)
        for t in range(4):
            k(f'v_mfma_f32_16x16x32_bf16 {acc(n,t)}, {A(16*s+4*t,4)}, {V(XR+4*(q%NR),4)}, {acc(n,t) if s else 0}')
            if t == 0 and ex: k.do(ex[0])
            if t == 2:
                for e in ex[1:]: k.do(e)
            if t in (1, 3) and tr: k.do(tr.pop(0))
        assert not tr
    assert not trq and not xq and not misc
    k.st()
    OUT = 144; T = 96
    reduce4b(k, acc, 4, T, OUT, w2q, NF)
    L = []
    for t in range(4):
        for j in range(2):
            L.append(f'v_lshlrev_b32 v{T+4*t+2*j}, 16, v{B1+2*t+j}\nv_and_b32 v{T+4*t+2*j+1}, s37, v{B1+2*t+j}')
    for j in range(0, 16, 2): L.append(f'v_pk_add_f32 {V(OUT+j,2)}, {V(OUT+j,2)}, {V(T+j,2)}')
    for j in range(0, 16, 2): L.append(f'v_pk_mul_f32 {V(T+j,2)}, {V(OUT+j,2)}, {V(OUT+j,2)}')
    for j in range(16): L.append(f'v_fma_f32 v{T+j}, v{T+j}, s36, v28')
    for j in range(0, 16, 2): L.append(f'v_pk_mul_f32 {V(T+j,2)}, {V(T+j,2)}, {V(OUT+j,2)}')
    for j in range(16): L.append(f'v_exp_f32 v{T+j}, v{T+j}')
    for j in range(16): L.append(f'v_add_f32 v{T+j}, 1.0, v{T+j}')
    for j in range(16): L.append(f'v_rcp_f32 v{T+j}, v{T+j}')
    for j in range(0, 16, 2): L.append(f'v_pk_mul_f32 {V(T+j,2)}, {V(T+j,2)}, {V(OUT+j,2)}')
    for j in range(8): L.append(f'v_cvt_pk_bf16_f32 v{OUT+j}, v{T+2*j}, v{T+2*j+1}')
    k.weave(L, take(w2q, NG))
    k(f'buffer_store_dwordx4 {V(OUT,4)}, v2, {WS}, s7 offen sc1\nbuffer_store_dwordx4 {V(OUT+4,4)}, v2, {WS}, s7 offen offset:1024 sc1')
    k.issue('ust'); k.issue('ust')
    k.st()
    k.run(take(w2q, NS3))
    k.signal('s6', 'ust'); k.st(); k.stflush()
    k.run(w2q)
    k('s_branch mn_b2\nmn_b1skip:\ns_waitcnt vmcnt(0)')
    k.run(w_tr(2, W2A)); k('s_waitcnt lgkmcnt(0)')
    k.run(w_dma(k, 2, W2B))
    k('mn_b2:')

def gen_b2(k, NR=24, NI=12, QB=28):
    k('v_cmp_le_u32 vcc, 6, v1\nv_cndmask_b32 v28, 0, 18, vcc\nv_add_u32 v28, v28, v1\nv_lshlrev_b32 v28, 7, v28')
    k(f's_mul_i32 s3, s24, 80\ns_lshr_b32 s3, s3, 6\ns_mul_i32 s3, s3, 24\ns_mul_i32 s4, s20, 6\ns_add_u32 s3, s3, s4\ns_lshl_b32 s3, s3, 7\ns_add_u32 s3, s3, s27\ns_add_u32 s6, s3, {F_B1}')
    k(f's_mul_i32 s3, s24, 245760\ns_mul_i32 s4, s20, 12288\ns_add_u32 s3, s3, s4\ns_add_u32 s3, s3, s27\ns_add_u32 s30, s3, {oUB}')
    for c in range(1, 5): k(f's_add_u32 s{30+c}, s30, {49152*c}'.replace('s34,', 's36,'))
    k('v_lshlrev_b32 v12, 1, v4\ns_lshl_b32 s3, s23, 7\ns_lshl_b32 s4, s20, 5\ns_add_u32 s35, s3, s4')
    k('buffer_load_ushort v12, v12, s[16:19], s35 offen')
    ACC = 32; UR = 112
    acc = lambda n, c: V(ACC + 20*n + 4*c, 4)
    for c in range(5):
        k(f'v_mfma_f32_16x16x32_bf16 {acc(0,c)}, {V(RES+2*c,4)}, {V(SEL,4)}, 0')
    k.run(reduce4(102400, False))
    k('s_lshl_b32 s3, s28, 30\nv_add_u32 v13, s3, v2')
    k.st(); k.poll('0xfff', 's6'); k.st()
    SU = ['s37', 's38', 's32', 's33', 's36']
    k('s_mov_b32 s37, s30\ns_mov_b32 s38, s31')
    def ul(q):
        s, c = divmod(q, 5)
        pre = f's_add_u32 {SU[c]}, {SU[c]}, 8192\n' if s == 8 else ''
        vo = 'v3' if (s & 4) else 'v2'
        return k.ld(pre + f'buffer_load_dwordx4 {V(UR+4*(q%NR),4)}, {vo}, {WS}, {SU[c]} offen offset:{1024*(s&3)} sc1', ('u', q))
    uq = [ul(q) for q in range(60)]
    trq = w_tr(2, W2B)
    k.weave(take(uq, NI), take(trq, 24))
    k('v_lshlrev_b32 v12, 16, v12')
    early, late = wp_loads(k, 'v13')
    issued = NI
    for q in range(60):
        s, c = divmod(q, 5)
        k.vmwait(('u', q))
        if q in (0, 20, 40): k.st()
        ex = []
        while issued < 60 and issued < q + NR and len(ex) < 2:
            ex += take(uq, 1); issued += 1
        tr = take(trq, 2)
        if q == QB: assert not trq; k('s_waitcnt lgkmcnt(0)\ns_barrier')
        if not ex and q >= QB: ex += take(early, 1)
        for n in range(4):
            k(f'v_mfma_f32_16x16x32_bf16 {acc(n,c)}, {V(UR+4*(q%NR),4)}, {A(16*s+4*n,4)}, {acc(n,c) if (s or n == 0) else 0}')
            if n == 0 and ex: k.do(ex[0])
            if n == 2:
                for e in ex[1:]: k.do(e)
            if n in (1, 3) and tr: k.do(tr.pop(0))
    assert QB <= 30
    k.st()
    OUT = 112; T = 132
    reduce4b(k, acc, 5, T, OUT, early)
    for j in range(0, 20, 2): k(f'v_pk_add_f32 {V(OUT+j,2)}, {V(OUT+j,2)}, v[12:13] op_sel_hi:[1,0]')
    for j in range(10): k(f'v_cvt_pk_bf16_f32 v{RES+j}, v{OUT+2*j}, v{OUT+2*j+1}')
    k('s_cmp_eq_u32 s28, 1\ns_cbranch_scc1 mn_final')
    pend0 = list(k.pend); pn0 = k.pn
    k(f's_add_u32 s27, s27, {LS}')
    k('v_lshrrev_b32 v14, 1, v5\nv_lshlrev_b32 v14, 9, v14\nv_lshl_add_u32 v14, v4, 4, v14\nv_and_b32 v15, 1, v5\nv_lshl_add_u32 v14, v15, 3, v14')
    k('s_lshr_b32 s3, s20, 1\ns_lshl_b32 s36, s23, 1\ns_add_u32 s36, s36, s3\ns_and_b32 s37, s20, 1')
    k('s_mul_i32 s3, s36, 40960\ns_mul_i32 s4, s24, 5120\ns_add_u32 s3, s3, s4\ns_lshl_b32 s4, s37, 8\ns_add_u32 s3, s3, s4\ns_add_u32 s7, s3, s27')
    k.inval()
    for c in range(5): k.mem('buffer_store_dwordx2', V(RES+2*c, 2), 'v14', WS, 's7', 1024*c, 'sc1', tag='xn')
    k(f'v_pk_add_f32 v[32:33], {V(OUT,2)}, {V(OUT+2,2)}\nv_pk_mul_f32 v[34:35], {V(OUT,2)}, {V(OUT,2)}\nv_pk_add_f32 v[36:37], {V(OUT+4,2)}, {V(OUT+6,2)}\nv_pk_mul_f32 v[38:39], {V(OUT+2,2)}, {V(OUT+2,2)}')
    for j in range(4, 20, 2):
        if j >= 8:
            a = 32 if j % 4 == 0 else 36
            k(f'v_pk_add_f32 {V(a,2)}, {V(a,2)}, {V(OUT+j,2)}')
        b = 34 if j % 4 == 0 else 38
        k(f'v_pk_fma_f32 {V(b,2)}, {V(OUT+j,2)}, {V(OUT+j,2)}, {V(b,2)}')
    k('v_pk_add_f32 v[32:33], v[32:33], v[36:37]\nv_pk_add_f32 v[34:35], v[34:35], v[38:39]')
    k('v_add_f32 v32, v32, v33\nv_add_f32 v34, v34, v35')
    k('v_mov_b32 v33, v32\nv_mov_b32 v35, v34\nv_permlane16_swap_b32 v32, v33\nv_permlane16_swap_b32 v34, v35\nv_add_f32 v32, v32, v33\nv_add_f32 v34, v34, v35')
    k('v_mov_b32 v33, v32\nv_mov_b32 v35, v34\nv_permlane32_swap_b32 v32, v33\nv_permlane32_swap_b32 v34, v35\nv_add_f32 v32, v32, v33\nv_add_f32 v34, v34, v35')
    k('v_cmp_eq_u32 vcc, 1, v5\nv_cndmask_b32 v32, v32, v34, vcc\nv_lshlrev_b32 v14, 3, v4\nv_lshl_add_u32 v14, v5, 2, v14')
    k(f's_lshl_b32 s3, s35, 2\ns_add_u32 s3, s3, s27\ns_add_u32 s3, s3, {oSTA}\ns_mov_b32 exec_hi, 0')
    k(f'buffer_atomic_add_f32 v32, v14, {WS}, s3 offen sc1\ns_mov_b64 exec, -1'); k.issue('xn')
    k(f's_lshl_b32 s3, s23, 3\ns_add_u32 s3, s3, s24\ns_lshl_b32 s3, s3, 7\ns_add_u32 s3, s3, s27\ns_add_u32 s6, s3, {F_B2}')
    k.st(); k.run(early); k.signal('s6', 'xn'); k.st(); k.stflush()
    k.run(late)
    if PROF['on']: k(f'v_mov_b32 v234, v{VP}')
    k('s_mov_b32 s28, 1\ns_branch mn_a1')
    k('mn_final:')
    k('v_mul_u32_u24 v14, 1280, v4\nv_lshl_add_u32 v14, v5, 3, v14\ns_mul_i32 s3, s35, 640\ns_mul_i32 s4, s24, 160\ns_add_u32 s3, s3, s4')
    for c in range(5): k(f'buffer_store_dwordx2 {V(RES+2*c,2)}, v14, s[40:43], s3 offen offset:{32*c}')
    if PROF['on']:
        k.pend = pend0; k.pn = pn0; k.st(); k('s_waitcnt vmcnt(0)'); k.st(); k.stflush()
        k(f's_lshl_b32 s3, s2, 2\ns_add_u32 s3, s3, s20\ns_lshl_b32 s3, s3, 9\ns_add_u32 s3, s3, {PROF["off"] + 131072}\nv_lshlrev_b32 v8, 2, v1')
        k(f'buffer_store_dword v234, v8, {WS}, s3 offen\nbuffer_store_dword v{VP}, v8, {WS}, s3 offen offset:256')

def gen_main(**kw):
    k = M('mn')
    k(f's_cmp_ge_u32 s2, 256\ns_cbranch_scc1 mn_end')
    ptrs = [(8, 88, WS_BYTES), (12, 48, 1536*2), (16, 64, 2048*2), (40, 72, 2048*640*2), (44, 0, 2048*640*2), (60, 40, 2048*1536*2), (64, 56, 2048*1536*2)]
    for s, off, nb in ptrs: k(f's_load_dwordx2 s[{s}:{s+1}], s[0:1], {off}')
    k('v_lshrrev_b32 v2, 6, v0\nv_and_b32 v1, 63, v0\nv_readfirstlane_b32 s20, v2')
    for s, off, nb in ptrs: k(f's_mov_b32 s{s+2}, {nb}\ns_mov_b32 s{s+3}, 0x20000')
    k('s_and_b32 s3, s2, 1\ns_lshl_b32 s3, s3, 3\ns_bfe_u32 s4, s2, 0x30003\ns_add_u32 s21, s3, s4')
    k('s_bfe_u32 s3, s2, 0x20001\ns_lshl_b32 s3, s3, 2\ns_lshr_b32 s4, s2, 6\ns_add_u32 s22, s3, s4')
    k(f's_mul_i32 s29, s22, {WP_STRIDE}\ns_mov_b32 s27, {LB}\ns_mov_b32 s28, 0')
    k('v_lshlrev_b32 v2, 4, v1\nv_add_u32 v3, 4096, v2\nv_and_b32 v4, 15, v1\nv_lshrrev_b32 v5, 4, v1\nv_and_b32 v6, 31, v1\nv_lshrrev_b32 v7, 5, v1')
    k('s_waitcnt lgkmcnt(0)')
    early, late = wp_loads(k)
    for g in early + late: g()
    k('s_bfe_u32 s3, s2, 0x20001\ns_lshl_b32 s3, s3, 3\ns_bfe_u32 s4, s2, 0x30003\ns_add_u32 s23, s3, s4')
    k('s_and_b32 s3, s2, 1\ns_lshl_b32 s3, s3, 2\ns_lshr_b32 s4, s2, 6\ns_add_u32 s24, s3, s4')
    k('s_lshr_b32 s3, s2, 3\ns_mul_i32 s4, s3, 205\ns_lshr_b32 s4, s4, 10\ns_mul_i32 s5, s4, 5\ns_sub_u32 s3, s3, s5')
    k('s_and_b32 s5, s2, 1\ns_mul_i32 s5, s5, 5\ns_add_u32 s25, s3, s5\ns_bfe_u32 s5, s2, 0x20001\ns_mul_i32 s5, s5, 6\ns_add_u32 s26, s4, s5')
    k('v_mul_u32_u24 v8, 1280, v4\nv_lshl_add_u32 v8, v5, 3, v8\ns_lshl_b32 s3, s23, 2\ns_add_u32 s3, s3, s20\ns_mul_i32 s3, s3, 20480\ns_mul_i32 s4, s24, 160\ns_add_u32 s3, s3, s4')
    for c in range(5): k(f'buffer_load_dwordx2 {V(RES+2*c,2)}, v8, s[44:47], s3 offen offset:{32*c}')
    k(f'v_mov_b32 v254, 0\nv_mov_b32 v255, 0\nv_mov_b32 v{VP}, 0')
    k('v_and_b32 v28, 1, v4\nv_cmp_eq_u32 vcc, 1, v28\nv_mov_b32 v28, 0x3f80\nv_mov_b32 v29, 0x3f800000\nv_cndmask_b32 v28, v28, v29, vcc')
    k('v_lshrrev_b32 v29, 2, v4\nv_cmp_eq_u32 vcc, v29, v5\nv_cndmask_b32 v28, 0, v28, vcc\nv_bfe_u32 v29, v4, 1, 1')
    for r in range(4): k(f'v_cmp_eq_u32 vcc, {r}, v29\nv_cndmask_b32 v{SEL+r}, 0, v28, vcc')
    k('v_add_u32 v228, 61440, v2\nv_add_u32 v229, 122880, v2')
    k('s_mul_i32 s3, s20, 1572864\ns_lshl_b32 s4, s26, 7\ns_add_u32 s48, s3, s4\ns_lshl_b32 s4, s23, 7\ns_add_u32 s49, s3, s4')
    k('s_mul_i32 s50, s20, 20480\ns_add_u32 s50, s50, 40960\ns_and_b32 s3, s20, 1\ns_lshl_b32 s3, s3, 12\ns_lshr_b32 s4, s20, 1\ns_mul_i32 s4, s4, 122880\ns_add_u32 s51, s3, s4\ns_add_u32 s51, s51, 30720\ns_sub_u32 s52, s51, s50')
    k(f'v_lshrrev_b32 v28, 3, v1\nv_lshlrev_b32 v{VO2}, 12, v28\nv_mul_u32_u24 v{VO1}, 3072, v28\nv_and_b32 v29, 7, v1')
    k(f'v_bfe_u32 v28, v1, 4, 2\nv_lshlrev_b32 v28, 1, v28\nv_xor_b32 v28, v28, v29\nv_lshl_add_u32 v{VO2}, v28, 4, v{VO2}')
    k(f'v_bfe_u32 v28, v1, 4, 1\nv_lshlrev_b32 v28, 1, v28\nv_xor_b32 v28, v28, v29\nv_xor_b32 v29, 4, v28\nv_lshl_add_u32 v{VO1+1}, v29, 4, v{VO1}\nv_lshl_add_u32 v{VO1}, v28, 4, v{VO1}')
    for n in range(1, 4): k(f'v_add_u32 v{VO2+n}, {n*(8*4096-1024)}, v{VO2}')
    e = 8*3072 - 1024
    k(f'v_add_u32 v{VO1+2}, {2*e}, v{VO1}\nv_add_u32 v{VO1+3}, {3*e}, v{VO1+1}\nv_add_u32 v{VO1+1}, {e}, v{VO1+1}')
    k('v_lshrrev_b32 v28, 2, v1\nv_lshlrev_b32 v28, 7, v28\nv_and_b32 v29, 3, v1\nv_lshl_add_u32 v28, v29, 3, v28\nv_add_u32 v28, s50, v28\nv_bfe_u32 v29, v1, 3, 2')
    k('v_lshlrev_b32 v31, 9, v5\nv_add_u32 v31, v31, v28')
    for n in range(4):
        k(f's_add_u32 s3, s20, {n}\ns_and_b32 s3, s3, 3\nv_xor_b32 v30, s3, v29\nv_lshl_add_u32 v{TB+n}, v30, 5, v28\nv_add_u32 v{TB15+n}, s52, v{TB+n}')
        k(f'v_xor_b32 v30, {n}, v29\nv_lshl_add_u32 v{TA+n}, v30, 5, v31\nv_add_u32 v{TA15+n}, s52, v{TA+n}')
    w1q = gen_a1(k, **kw.get('a1', {}))
    w2q = gen_a2(k, w1q, **kw.get('a2', {}))
    gen_b1(k, w2q, **kw.get('b1', {}))
    gen_b2(k, **kw.get('b2', {}))
    k('mn_end:\ns_endpgm')
    print('stamps per layer', k.pn)
    return k
```

```python
import sys
sys.path.insert(0, 'work')
from asmlib import *
from layout2 import *
import k0b, main3 as main

def build(path, prof=False, **kw):
    PROF['on'] = prof; PROF['off'] = PROF_OFF
    out = []; kds = []
    def entry(name, nv=512, acc=256):
        kds.append(KD.format(name=name, nv=nv, acc=acc))
        return f'.globl {name}\n.p2align 8\n.type {name},@function\n{name}:'
    K0 = k0b.gen_k0()
    K0.profile_wrap()
    out.append(entry('k0_kernel', 256, 256))
    if prof: out.append('s_mov_b32 s65, 0')
    out += fix_hazards(K0.L)
    Mn = main.gen_main(**kw)
    out.append(entry('mn_kernel'))
    out += fix_hazards(Mn.L)
    launches = [('k0_kernel', k0b.K0_WGS, k0b.K0_LDS), ('mn_kernel', 256, 163840)]
    hdr = ''.join(f'; @launch kernel={n} grid=({g},1,1) block=(256,1,1) lds={l}\n' for n, g, l in launches)
    txt = hdr + '.amdgcn_target "amdgcn-amd-amdhsa--gfx950"\n.text\n' + '\n'.join(out) + '\n.section .rodata,"a"\n' + '\n'.join(kds) + '\n'
    open(path, 'w').write(txt)

if __name__ == '__main__':
    p = sys.argv[1] if len(sys.argv) > 1 else 'interleave_layers__linear_kernel_hedgehog__mixer_token_mlp__prompt.s'
    build(p, len(sys.argv) > 2)
```
